```python
import torch

def _softmax(x, axis=-1):
    return torch.softmax(x, dim=axis)
def _gelu(x):
    return torch.nn.functional.gelu(x, approximate="tanh")
def _silu(x):
    return torch.nn.functional.silu(x)
def _sigmoid(x):
    return torch.sigmoid(x)
def _layernorm(x, axis=-1, eps=1e-5):
    m = x.mean(dim=axis, keepdim=True)
    v = x.var(dim=axis, keepdim=True, unbiased=False)
    return (x - m) / torch.sqrt(v + eps)
def _scatter_add(tgt, idx, src, axis=0):
    return tgt.clone().index_add_(axis, idx, src)
def _segment_sum(src, seg, n):
    out = torch.zeros((n,) + src.shape[1:], dtype=src.dtype)
    return out.index_add_(0, seg, src)
def _pad(x, pw):
    flat = tuple(v for pair in reversed(pw) for v in pair)
    return torch.nn.functional.pad(x, flat)

kernel_name = 'recurrent_scan__ssm_conv_s4d__geglu_ffn__prompt'

def setup_inputs():

    _w = (lambda a: (lambda t: t.to(torch.bfloat16) if t.is_floating_point() else t)(torch.as_tensor(a)))
    def _A_setup():
        Bsz, L, D, N = 1, 2048, 512, 128
        return {
            "u": _w((lambda *s: torch.randn(*s, dtype=torch.bfloat16) * 0.05)(Bsz, L, D)),
            "log_A_real": _w((lambda *s: torch.randn(*s, dtype=torch.bfloat16) * 6.4)(D, N) * 0.5),
            "A_imag": _w((lambda *s: torch.randn(*s, dtype=torch.bfloat16) * 0.05)(D, N) * 3.14),
            "C_real": _w((lambda *s: torch.randn(*s, dtype=torch.bfloat16) * 0.05)(D, N) / N ** 0.5),
            "C_imag": _w((lambda *s: torch.randn(*s, dtype=torch.bfloat16) * 0.05)(D, N) / N ** 0.5),
            "log_dt": _w((lambda *s: torch.randn(*s, dtype=torch.bfloat16) * 0.05)(D) * 0.5 - 4.0),
            "D_skip": _w((lambda *s: torch.randn(*s, dtype=torch.bfloat16) * 0.05)(D)),
        }
    _A_in = _A_setup()

    def _B_setup():
        B, S, D, F = 1, 2048, 512, 1792
        return {
            "x": _w((lambda *s: torch.randn(*s, dtype=torch.bfloat16) * 0.05)(B, S, D)),
            "w_gate": _w((lambda *s: torch.randn(*s, dtype=torch.bfloat16) * 0.05)(D, F)),
            "w_up": _w((lambda *s: torch.randn(*s, dtype=torch.bfloat16) * 0.05)(D, F)),
            "w_down": _w((lambda *s: torch.randn(*s, dtype=torch.bfloat16) * 0.05)(F, D)),
        }
    _B_in = _B_setup()

    return {
        "A_u": _A_in["u"],
        "A_log_A_real": _A_in["log_A_real"],
        "A_A_imag": _A_in["A_imag"],
        "A_C_real": _A_in["C_real"],
        "A_C_imag": _A_in["C_imag"],
        "A_log_dt": _A_in["log_dt"],
        "A_D_skip": _A_in["D_skip"],
        "B_x": _B_in["x"],
        "B_w_gate": _B_in["w_gate"],
        "B_w_up": _B_in["w_up"],
        "B_w_down": _B_in["w_down"],
    }

def reference(A_u, A_log_A_real, A_A_imag, A_C_real, A_C_imag, A_log_dt, A_D_skip, B_x, B_w_gate, B_w_up, B_w_down):
    def _A_ref(u, log_A_real, A_imag, C_real, C_imag, log_dt, D_skip):
        L = u.shape[1]
        dt = torch.exp(log_dt)
        A = -torch.exp(log_A_real) + 1j * A_imag
        C = (C_real + 1j * C_imag) * dt[:, None]
        pos = (lambda x, dt: x.to(dt))(torch.arange(L), log_dt.dtype)
        P = torch.exp((A * dt[:, None])[:, :, None] * pos[None, None, :])
        K = 2.0 * torch.einsum("dn,dnl->dl", C, P).real
        L2 = 2 * L
        u_t = (lambda x, *d: x.permute(*d))(u, 0, 2, 1)
        Kf = (lambda x, *a, **k: torch.fft.rfft(x.float(), *a, **k))(K, L2)
        Uf = (lambda x, *a, **k: torch.fft.rfft(x.float(), *a, **k))(u_t, L2)
        y = (lambda x, *a, **k: torch.fft.irfft(x, *a, **k).to(torch.bfloat16))(Uf * Kf[None, :, :], L2)[:, :, :L]
        y = (lambda x, *d: x.permute(*d))(y, 0, 2, 1)
        return y + u * D_skip[None, None, :]

    def _B_ref(x, w_gate, w_up, w_down):
        return (_gelu(x @ w_gate) * (x @ w_up)) @ w_down

    x = A_u
    xn = _layernorm(x, axis=-1)
    s = _A_ref(xn, A_log_A_real, A_A_imag, A_C_real, A_C_imag, A_log_dt, A_D_skip)
    g = _silu(_B_ref(xn, B_w_gate, B_w_up, B_w_down))
    return x + s * g
```

```python
import struct, sys
import numpy as np

NAME = "recurrent_scan__ssm_conv_s4d__geglu_ffn__prompt"


def f2u(x):
    return struct.unpack("<I", struct.pack("<f", np.float32(x)))[0]


def hx(x):
    return "0x%08x" % (x & 0xFFFFFFFF)


L2E = 1.4426950408889634
L2E_HI = f2u(L2E)
L2E_LO = f2u(L2E - float(np.float32(L2E)))
I2P = 0.15915494309189535
I2P_HI = f2u(I2P)
I2P_LO = f2u(I2P - float(np.float32(I2P)))
LN2 = f2u(0.6931471805599453)

XNF = 0x0
IMG = 0x200000
IMG_STRIDE = 21504
UR_O = 4160
KF_OFF = 9216
WGF = 0xC80000
WDF = 0x1000000
HF = 0x1200000
YT = 0x1900000
WS_SIZE = 0x1B00000


class Asm:
    def __init__(self):
        self.lines = []

    def __call__(self, s):
        for ln in s.strip("\n").split("\n"):
            ln = ln.strip()
            if ln:
                self.lines.append("    " + ln)

    def label(self, l):
        self.lines.append(l + ":")

    def raw(self, s):
        self.lines.append(s)

    def text(self):
        return "\n".join(self.lines) + "\n"


a = Asm()

K1_KG = 512
K1_LN = 65
K1_SG = 224
K1_SD = 112
K1_TOTAL = K1_KG + K1_LN + K1_SG + K1_SD


def ws_srd(dst, base_lo=14, base_hi=15):
    a(f"""
    s_mov_b32 s{dst}, s{base_lo}
    s_and_b32 s{dst+1}, s{base_hi}, 0xffff
    s_mov_b32 s{dst+2}, {hx(WS_SIZE)}
    s_mov_b32 s{dst+3}, 0x00020000
    """)


def gen_k1():
    a.raw(".text")
    a.raw(".globl k1_kernel")
    a.raw(".p2align 8")
    a.raw(".type k1_kernel,@function")
    a.label("k1_kernel")
    a(f"""
    s_cmp_ge_u32 s2, {K1_TOTAL}
    s_cbranch_scc1 k1_end
    s_load_dwordx2 s[14:15], s[0:1], 104
    v_lshrrev_b32 v1, 6, v0
    v_and_b32 v2, 63, v0
    v_readfirstlane_b32 s3, v1
    s_cmp_lt_u32 s2, {K1_KG}
    s_cbranch_scc1 k1_kgen
    s_cmp_lt_u32 s2, {K1_KG + K1_LN}
    s_cbranch_scc1 k1_ln
    s_cmp_lt_u32 s2, {K1_KG + K1_LN + K1_SG}
    s_cbranch_scc1 k1_shg
    s_branch k1_shd
    """)
    a.label("k1_kgen")
    a(f"""
    s_load_dwordx8 s[4:11], s[0:1], 8
    s_load_dwordx2 s[12:13], s[0:1], 40
    s_waitcnt lgkmcnt(0)
    """)
    ws_srd(80)
    a(f"""
    s_lshl_b32 s84, s2, 8
    s_lshl_b32 s85, s3, 6
    s_add_u32 s84, s84, s85
    s_add_u32 s4, s4, s84
    s_addc_u32 s5, s5, 0
    s_add_u32 s6, s6, s84
    s_addc_u32 s7, s7, 0
    s_add_u32 s8, s8, s84
    s_addc_u32 s9, s9, 0
    s_add_u32 s10, s10, s84
    s_addc_u32 s11, s11, 0
    s_lshr_b32 s85, s2, 1
    s_lshl_b32 s85, s85, 2
    s_add_u32 s12, s12, s85
    s_addc_u32 s13, s13, 0
    s_load_dwordx16 s[16:31], s[4:5], 0
    s_load_dwordx16 s[32:47], s[6:7], 0
    s_load_dwordx16 s[48:63], s[8:9], 0
    s_load_dwordx16 s[64:79], s[10:11], 0
    s_load_dword s86, s[12:13], 0
    s_mov_b32 s88, {hx(L2E_HI)}
    s_mov_b32 s89, {hx(L2E_LO)}
    s_mov_b32 s90, {hx(I2P_HI)}
    s_mov_b32 s91, {hx(I2P_LO)}
    v_and_b32 v3, 31, v2
    v_lshrrev_b32 v4, 5, v2
    v_lshlrev_b32 v4, 4, v4
    v_xor_b32 v4, 16, v4
    v_lshlrev_b32 v10, 1, v3
    v_add_u32 v10, 240, v10
    v_subrev_u32 v11, 12, v3
    v_lshrrev_b32 v12, 1, v11
    v_lshlrev_b32 v12, 8, v12
    v_and_b32 v11, 1, v11
    v_lshlrev_b32 v11, 2, v11
    v_add_u32 v11, v11, v12
    v_add_u32 v11, 512, v11
    v_subrev_u32 v12, 12, v3
    v_lshlrev_b32 v12, 8, v12
    v_mov_b32 v13, 0
    v_mov_b32 v5, v3
    v_cmp_le_u32 vcc, 8, v3
    s_nop 1
    v_cndmask_b32 v5, v5, v10, vcc
    v_cmp_le_u32 vcc, 12, v3
    s_nop 1
    v_cndmask_b32 v5, v5, v11, vcc
    v_cmp_le_u32 vcc, 16, v3
    s_nop 1
    v_cndmask_b32 v5, v5, v12, vcc
    v_cmp_le_u32 vcc, 21, v3
    s_nop 1
    v_cndmask_b32 v5, v5, v13, vcc
    v_cvt_f32_u32 v5, v5
    v_lshlrev_b32 v6, 3, v3
    v_cvt_f32_u32 v6, v6
    """)
    for i in range(16):
        a(f"v_mov_b32 v{64+i}, 0")
    a(f"""
    s_waitcnt lgkmcnt(0)
    s_lshr_b32 s87, s86, 16
    s_and_b32 s86, s86, 0xffff
    s_bitcmp1_b32 s2, 0
    s_cselect_b32 s86, s87, s86
    s_lshl_b32 s86, s86, 16
    v_mov_b32 v10, s86
    v_mul_f32 v14, s88, v10
    v_fma_f32 v15, v10, s88, -v14
    v_fma_f32 v15, v10, s89, v15
    v_exp_f32 v16, v14
    v_mul_f32 v15, {hx(LN2)}, v15
    s_nop 0
    v_fma_f32 v16, v16, v15, v16
    v_cvt_pk_bf16_f32 v16, v16, v16
    v_lshlrev_b32 v7, 16, v16
    v_add_f32 v8, v7, v7
    """)
    for it in range(16):
        a(f"""
        v_lshlrev_b32_e64 v10, v4, s{16+it}
        v_lshlrev_b32_e64 v11, v4, s{32+it}
        v_lshlrev_b32_e64 v12, v4, s{48+it}
        v_lshlrev_b32_e64 v13, v4, s{64+it}
        v_and_b32 v10, 0xffff0000, v10
        v_and_b32 v11, 0xffff0000, v11
        v_and_b32 v12, 0xffff0000, v12
        v_and_b32 v13, 0xffff0000, v13
        v_mul_f32 v14, s88, v10
        v_fma_f32 v15, v10, s88, -v14
        v_fma_f32 v15, v10, s89, v15
        v_exp_f32 v16, v14
        v_mul_f32 v15, {hx(LN2)}, v15
        v_mul_f32 v11, v11, v7
        v_fma_f32 v16, v16, v15, v16
        v_mul_f32 v18, s90, v11
        v_cvt_pk_bf16_f32 v16, v16, v16
        v_fma_f32 v19, v11, s90, -v18
        v_lshlrev_b32 v16, 16, v16
        v_fma_f32 v19, v11, s91, v19
        v_mul_f32 v16, v16, v7
        v_mul_f32 v20, v12, v8
        v_mul_f32 v21, v13, v8
        v_mul_f32 v17, {hx(L2E_HI | 0x80000000)}, v16
        v_mul_f32 v23, v18, v5
        v_mul_f32 v32, v18, v6
        v_mul_f32 v22, v17, v5
        v_mul_f32 v31, v17, v6
        v_fma_f32 v24, v18, v5, -v23
        v_fma_f32 v33, v18, v6, -v32
        v_exp_f32 v22, v22
        v_exp_f32 v31, v31
        v_fma_f32 v24, v19, v5, v24
        v_fma_f32 v33, v19, v6, v33
        v_fract_f32 v23, v23
        v_fract_f32 v32, v32
        v_add_f32 v23, v23, v24
        v_add_f32 v32, v32, v33
        v_sin_f32 v25, v23
        v_cos_f32 v26, v23
        v_sin_f32 v34, v32
        v_cos_f32 v35, v32
        v_mul_f32 v29, v21, v25
        v_mul_f32 v30, v21, v26
        v_fma_f32 v29, v20, v26, -v29
        v_fma_f32 v30, v20, v25, v30
        v_mul_f32 v36, v31, v35
        v_mul_f32 v37, v31, v34
        v_mul_f32 v27, v22, v29
        v_mul_f32_e64 v28, -v22, v30
        s_nop 1
        v_permlane32_swap_b32 v36, v37
        v_permlane32_swap_b32 v27, v28
        s_nop 1
        v_mfma_f32_32x32x2_f32 v[64:79], v27, v36, v[64:79]
        v_mfma_f32_32x32x2_f32 v[64:79], v28, v37, v[64:79]
        """)
    a(f"""
    v_lshrrev_b32 v10, 5, v2
    v_lshlrev_b32 v10, 9, v10
    v_lshl_add_u32 v10, v3, 2, v10
    s_lshl_b32 s84, s3, 12
    v_add_u32 v10, s84, v10
    s_nop 15
    s_nop 3
    """)
    for g in range(4):
        for r in range(4):
            a(f"ds_write_b32 v10, v{64+4*g+r} offset:{1024*g+128*r}")
    a(f"""
    s_waitcnt lgkmcnt(0)
    s_barrier
    """)
    a(f"""
    s_lshl_b32 s84, s3, 3
    v_lshlrev_b32 v9, 5, v2
    v_add_u32 v9, s84, v9
    """)
    for e in range(8):
        b = 40 + 4 * e
        a(f"""
        v_add_u32 v10, {e}, v9
        v_cvt_f32_u32 v10, v10
        v_cvt_pk_bf16_f32 v10, v10, v10
        v_lshlrev_b32 v10, 16, v10
        v_cvt_u32_f32 v10, v10
        v_lshrrev_b32 v11, 8, v10
        v_and_b32 v12, 7, v10
        v_lshrrev_b32 v13, 1, v10
        v_and_b32 v13, 0x7c, v13
        v_lshrrev_b32 v14, 1, v12
        v_add_u32 v14, 8, v14
        v_lshrrev_b32 v15, 2, v12
        v_lshl_add_u32 v15, v11, 1, v15
        v_add_u32 v15, 8, v15
        v_add_u32 v16, 12, v11
        v_cmp_le_u32 vcc, 1, v11
        s_nop 1
        v_cndmask_b32 v12, v12, v14, vcc
        v_cmp_le_u32 vcc, 2, v11
        s_nop 1
        v_cndmask_b32 v12, v12, v15, vcc
        v_cmp_le_u32 vcc, 4, v11
        s_nop 1
        v_cndmask_b32 v12, v12, v16, vcc
        v_lshl_add_u32 v12, v12, 7, v13
        ds_read2st64_b32 v[{b}:{b+1}], v12 offset0:0 offset1:16
        ds_read2st64_b32 v[{b+2}:{b+3}], v12 offset0:32 offset1:48
        """)
    a("s_waitcnt lgkmcnt(0)")
    for e in range(8):
        b = 40 + 4 * e
        a(f"""
        v_add_f32 v{b}, v{b}, v{b+1}
        v_add_f32 v{b+2}, v{b+2}, v{b+3}
        v_add_f32 v{b}, v{b}, v{b+2}
        """)
    for i in range(4):
        e0 = 40 + 8 * i
        e1 = 44 + 8 * i
        a(f"""
        v_cvt_pk_bf16_f32 v{20+i}, v{e0}, v{e1}
        v_lshlrev_b32 v10, 16, v{20+i}
        v_and_b32 v11, 0xffff0000, v{20+i}
        v_sub_f32 v10, v{e0}, v10
        v_sub_f32 v11, v{e1}, v11
        v_cvt_pk_bf16_f32 v{24+i}, v10, v11
        """)
    a(f"""
    s_mul_i32 s84, s2, {IMG_STRIDE}
    s_add_u32 s84, s84, {IMG + KF_OFF}
    s_mul_i32 s85, s3, {96*16}
    s_add_u32 s85, s85, s84
    s_add_u32 s86, s85, {4*96*16}
    v_lshlrev_b32 v10, 4, v2
    v_add_u32 v10, {32*16}, v10
    v_lshrrev_b32 v11, 5, v0
    v_mul_u32_u24 v11, {96*16}, v11
    v_and_b32 v12, 31, v0
    v_lshl_add_u32 v11, v12, 4, v11
    v_mov_b32 v28, 0
    v_mov_b32 v29, 0
    v_mov_b32 v30, 0
    v_mov_b32 v31, 0
    buffer_store_dwordx4 v[20:23], v10, s[80:83], s85 offen
    buffer_store_dwordx4 v[24:27], v10, s[80:83], s86 offen
    buffer_store_dwordx4 v[28:31], v11, s[80:83], s84 offen
    s_endpgm
    """)

    a.label("k1_ln")
    a(f"""
    s_load_dwordx2 s[4:5], s[0:1], 0
    s_sub_u32 s16, s2, {K1_KG}
    s_lshl_b32 s16, s16, 2
    s_add_u32 s16, s16, s3
    s_cmp_gt_u32 s16, 256
    s_cbranch_scc1 k1_end
    s_waitcnt lgkmcnt(0)
    """)
    ws_srd(80)
    a(f"""
    s_mov_b32 s84, s4
    s_and_b32 s85, s5, 0xffff
    s_mov_b32 s86, 0x200000
    s_mov_b32 s87, 0x00020000
    s_lshl_b32 s17, s16, 3
    s_sub_u32 s17, s17, 8
    s_lshl_b32 s18, s17, 10
    v_lshlrev_b32 v3, 4, v2
    v_add_u32 v3, s18, v3
    """)
    for r in range(9):
        a(f"""
        v_add_u32 v4, {r*1024}, v3
        buffer_load_dwordx4 v[{10+4*r}:{13+4*r}], v4, s[84:87], 0 offen
        """)

    def val(r, k):
        return 48 + 8 * r + k

    for r in range(9):
        a(f"s_waitcnt vmcnt({8-r})")
        for i in range(4):
            a(f"""
            v_lshlrev_b32 v{val(r,2*i)}, 16, v{10+4*r+i}
            v_and_b32 v{val(r,2*i+1)}, 0xffff0000, v{10+4*r+i}
            """)
        a(f"""
        v_add_f32 v4, v{val(r,0)}, v{val(r,1)}
        v_add_f32 v5, v{val(r,2)}, v{val(r,3)}
        v_add_f32 v6, v{val(r,4)}, v{val(r,5)}
        v_add_f32 v7, v{val(r,6)}, v{val(r,7)}
        v_add_f32 v4, v4, v5
        v_add_f32 v6, v6, v7
        v_add_f32 v{120+r}, v4, v6
        """)

    def dpp_reduce(base):
        for mod in ["row_shr:1 row_mask:0xf bank_mask:0xf bound_ctrl:0",
                    "row_shr:2 row_mask:0xf bank_mask:0xf bound_ctrl:0",
                    "row_shr:4 row_mask:0xf bank_mask:0xf bound_ctrl:0",
                    "row_shr:8 row_mask:0xf bank_mask:0xf bound_ctrl:0",
                    "row_bcast:15 row_mask:0xa bank_mask:0xf",
                    "row_bcast:31 row_mask:0xc bank_mask:0xf"]:
            for r in range(9):
                a(f"v_add_f32_dpp v{base+r}, v{base+r}, v{base+r} {mod}")

    a("s_nop 1")
    dpp_reduce(120)
    a("s_nop 1")
    for r in range(9):
        a(f"v_readlane_b32 s{20+r}, v{120+r}, 63")
    a("s_nop 1")
    inv512 = hx(f2u(1.0 / 512))
    for r in range(9):
        a(f"""
        v_mov_b32 v{130+r}, s{20+r}
        v_mul_f32 v{130+r}, {inv512}, v{130+r}
        """)
    for r in range(9):
        a(f"""
        v_sub_f32 v4, v{val(r,0)}, v{130+r}
        v_sub_f32 v5, v{val(r,1)}, v{130+r}
        v_mul_f32 v6, v4, v4
        v_mul_f32 v7, v5, v5
        """)
        for k in range(2, 8, 2):
            a(f"""
            v_sub_f32 v4, v{val(r,k)}, v{130+r}
            v_sub_f32 v5, v{val(r,k+1)}, v{130+r}
            v_fmac_f32 v6, v4, v4
            v_fmac_f32 v7, v5, v5
            """)
        a(f"v_add_f32 v{120+r}, v6, v7")
    a("s_nop 1")
    dpp_reduce(120)
    a("s_nop 1")
    for r in range(9):
        a(f"v_readlane_b32 s{32+r}, v{120+r}, 63")
    a("s_nop 1")
    eps = hx(f2u(1e-5))
    for r in range(9):
        a(f"""
        v_mov_b32 v4, s{32+r}
        v_mul_f32 v4, {inv512}, v4
        v_cvt_pk_bf16_f32 v4, v4, v{130+r}
        v_and_b32 v{160+r}, 0xffff0000, v4
        v_lshlrev_b32 v4, 16, v4
        v_add_f32 v4, {eps}, v4
        v_cvt_pk_bf16_f32 v4, v4, v4
        v_lshlrev_b32 v4, 16, v4
        v_sqrt_f32 v4, v4
        s_nop 0
        v_cvt_pk_bf16_f32 v4, v4, v4
        v_lshlrev_b32 v{140+r}, 16, v4
        v_rcp_f32 v{150+r}, v{140+r}
        """)
    for r in range(9):
        for k in range(0, 8, 2):
            x0, x1 = val(r, k), val(r, k + 1)
            a(f"""
            v_sub_f32 v4, v{x0}, v{160+r}
            v_sub_f32 v5, v{x1}, v{160+r}
            v_cvt_pk_bf16_f32 v4, v4, v5
            v_and_b32 v5, 0xffff0000, v4
            v_lshlrev_b32 v4, 16, v4
            v_mul_f32 v{x0}, v4, v{150+r}
            v_mul_f32 v{x1}, v5, v{150+r}
            v_fma_f32 v4, -v{x0}, v{140+r}, v4
            v_fma_f32 v5, -v{x1}, v{140+r}, v5
            v_fmac_f32 v{x0}, v4, v{150+r}
            v_fmac_f32 v{x1}, v5, v{150+r}
            """)
    a(f"""
    v_lshrrev_b32 v3, 1, v2
    v_lshlrev_b32 v3, 10, v3
    v_and_b32 v4, 1, v2
    v_lshl_add_u32 v3, v4, 9, v3
    """)
    for r in range(8):
        t = 10 + 4 * (r % 4)
        a(f"""
        s_add_u32 s18, s17, {r}
        s_ashr_i32 s19, s18, 5
        s_lshl_b32 s19, s19, 15
        s_and_b32 s18, s18, 31
        s_lshl_b32 s18, s18, 4
        s_add_u32 s18, s18, s19
        v_add_u32 v{26+r}, s18, v3
        """)
        for i in range(4):
            a(f"v_cvt_pk_bf16_f32 v{t+i}, v{val(r,2*i)}, v{val(r,2*i+1)}")
        a(f"buffer_store_dwordx4 v[{t}:{t+3}], v{26+r}, s[80:83], 0 offen")
    a(f"""
    s_mov_b32 s18, {8*IMG_STRIDE}
    v_mul_lo_u32 v3, v2, s18
    s_lshl_b32 s18, s17, 1
    s_sub_u32 s18, {IMG + 4080}, s18
    v_add_u32 v3, s18, v3
    """)
    n = 0
    for k in range(8):
        for copy in range(2):
            t = 10 + 4 * (n % 8)
            n += 1
            top = 8 if copy == 0 else 7
            for i in range(4):
                a(f"v_cvt_pk_bf16_f32 v{t+i}, v{val(top-2*i,k)}, v{val(top-1-2*i,k)}")
            a(f"""
            s_mov_b32 s18, {k*IMG_STRIDE + (UR_O if copy else 0)}
            buffer_store_dwordx4 v[{t}:{t+3}], v3, s[80:83], s18 offen
            """)
    a(f"""
    s_cmp_lg_u32 s16, 0
    s_cbranch_scc1 k1_end
    v_mov_b32 v44, 0
    v_mov_b32 v45, 0
    v_mov_b32 v46, 0
    v_mov_b32 v47, 0
    """)
    for k in range(8):
        for copy in range(2):
            a(f"s_mov_b32 s18, {k*IMG_STRIDE + (UR_O if copy else 0)}")
            for o in (16, 32, 48):
                a(f"buffer_store_dwordx4 v[44:47], v3, s[80:83], s18 offen offset:{o}")
    a("s_endpgm")

    a.label("k1_shg")
    a(f"""
    s_load_dwordx4 s[4:7], s[0:1], 64
    s_sub_u32 s16, s2, {K1_KG + K1_LN}
    s_lshl_b32 s16, s16, 2
    s_add_u32 s16, s16, s3
    s_lshr_b32 s17, s16, 4
    s_lshr_b32 s18, s16, 3
    s_and_b32 s18, s18, 1
    s_and_b32 s19, s16, 7
    s_waitcnt lgkmcnt(0)
    """)
    ws_srd(80)
    a(f"""
    s_cmp_eq_u32 s18, 0
    s_cselect_b32 s84, s4, s6
    s_cselect_b32 s85, s5, s7
    s_and_b32 s85, s85, 0xffff
    s_mov_b32 s86, {512*1792*2}
    s_mov_b32 s87, 0x00020000
    v_lshrrev_b32 v3, 5, v2
    v_mul_u32_u24 v3, {8*3584}, v3
    v_and_b32 v4, 31, v2
    v_lshl_add_u32 v3, v4, 1, v3
    s_lshl_b32 s20, s17, 6
    v_add_u32 v3, s20, v3
    s_mul_i32 s20, s19, {64*3584}
    """)
    for fr in range(4):
        for e in range(8):
            a(f"""
            buffer_load_ushort v{10+8*fr+e}, v3, s[84:87], s20 offen
            s_add_u32 s20, s20, 3584
            """)
        a(f"s_add_u32 s20, s20, {8*3584}")
    a(f"""
    s_lshl_b32 s20, s17, 1
    s_add_u32 s20, s20, s18
    s_lshl_b32 s20, s20, 15
    s_lshl_b32 s21, s19, 12
    s_add_u32 s20, s20, s21
    s_add_u32 s20, s20, {WGF}
    v_lshlrev_b32 v4, 4, v2
    """)
    for fr in range(4):
        a(f"s_waitcnt vmcnt({24-8*fr})")
        for i in range(4):
            a(f"v_lshl_or_b32 v{50+4*fr+i}, v{10+8*fr+2*i+1}, 16, v{10+8*fr+2*i}")
        a(f"buffer_store_dwordx4 v[{50+4*fr}:{53+4*fr}], v4, s[80:83], s20 offen offset:{1024*fr}")
    a("s_endpgm")

    a.label("k1_shd")
    a(f"""
    s_load_dwordx2 s[4:5], s[0:1], 80
    s_sub_u32 s16, s2, {K1_KG + K1_LN + K1_SG}
    s_lshl_b32 s16, s16, 2
    s_add_u32 s16, s16, s3
    s_lshr_b32 s17, s16, 4
    s_and_b32 s18, s16, 15
    s_waitcnt lgkmcnt(0)
    """)
    ws_srd(80)
    a(f"""
    s_mov_b32 s84, s4
    s_and_b32 s85, s5, 0xffff
    s_mov_b32 s86, {512*1792*2}
    s_mov_b32 s87, 0x00020000
    v_lshrrev_b32 v3, 5, v2
    v_lshlrev_b32 v3, 12, v3
    v_and_b32 v4, 31, v2
    v_lshl_add_u32 v3, v4, 1, v3
    s_lshl_b32 s20, s18, 6
    v_add_u32 v3, s20, v3
    s_lshl_b32 s20, s17, 16
    """)
    for fr in range(4):
        for e in range(8):
            f = 16 * fr + 8 * (e >> 2) + (e & 3)
            a(f"""
            s_add_u32 s21, s20, {f*1024}
            buffer_load_ushort v{10+8*fr+e}, v3, s[84:87], s21 offen
            """)
    a(f"""
    s_mul_i32 s20, s18, {112*1024}
    s_lshl_b32 s21, s17, 12
    s_add_u32 s20, s20, s21
    s_add_u32 s20, s20, {WDF}
    v_lshlrev_b32 v4, 4, v2
    """)
    for fr in range(4):
        a(f"s_waitcnt vmcnt({24-8*fr})")
        for i in range(4):
            a(f"v_lshl_or_b32 v{50+4*fr+i}, v{10+8*fr+2*i+1}, 16, v{10+8*fr+2*i}")
        a(f"buffer_store_dwordx4 v[{50+4*fr}:{53+4*fr}], v4, s[80:83], s20 offen offset:{1024*fr}")
    a.label("k1_end")
    a("s_endpgm")


K2_CV = 256
K2_G1 = 224
K2_TOTAL = K2_CV + K2_G1
K2_LDS = 73728


def gen_k2():
    a.raw(".text")
    a.raw(".globl k2_kernel")
    a.raw(".p2align 8")
    a.raw(".type k2_kernel,@function")
    a.label("k2_kernel")
    a(f"""
    s_cmp_ge_u32 s2, {K2_TOTAL}
    s_cbranch_scc1 k2_end
    s_load_dwordx2 s[14:15], s[0:1], 104
    v_lshrrev_b32 v1, 6, v0
    v_and_b32 v2, 63, v0
    v_readfirstlane_b32 s3, v1
    v_lshlrev_b32 v3, 4, v2
    s_waitcnt lgkmcnt(0)
    """)
    ws_srd(80)
    a(f"""
    s_cmp_ge_u32 s2, {K2_CV}
    s_cbranch_scc1 k2_gemm
    """)
    a(f"""
    s_lshr_b32 s16, s3, 1
    s_and_b32 s17, s3, 1
    s_lshl_b32 s18, s2, 1
    s_add_u32 s18, s18, s16
    s_mul_i32 s19, s18, {IMG_STRIDE}
    s_add_u32 s19, s19, {IMG}
    s_mul_i32 s20, s16, {IMG_STRIDE}
    s_mul_i32 s21, s17, {11*1024}
    s_add_u32 s19, s19, s21
    s_add_u32 s21, s20, s21
    """)
    for c in range(0, 12, 4):
        a(f"""
        s_mov_b32 m0, s21
        s_nop 0
        """)
        for j in range(4):
            if c + j >= 11:
                break
            if c + j == 10:
                a("s_cmp_eq_u32 s17, 1")
                a("s_cbranch_scc1 k2_cv_ld_done")
            a(f"buffer_load_dwordx4 v3, s[80:83], s19 offen offset:{1024*j} lds")
        a(f"""
        s_add_u32 s19, s19, 4096
        s_add_u32 s21, s21, 4096
        """)
    a.label("k2_cv_ld_done")
    a(f"""
    v_and_b32 v4, 31, v2
    v_lshrrev_b32 v5, 5, v2
    v_lshlrev_b32 v5, 3, v5
    v_sub_u32 v5, v5, v4
    v_lshlrev_b32 v5, 1, v5
    v_and_b32 v6, 1, v4
    v_mul_u32_u24 v6, {UR_O - 2}, v6
    v_add_u32 v5, v5, v6
    s_lshl_b32 s21, s17, 5
    s_add_u32 s21, s21, s20
    s_add_u32 s21, s21, {2*(2048 - 16*126)}
    v_add_u32 v8, s21, v5
    v_add_u32 v9, 1024, v8
    v_add_u32 v10, 2048, v8
    v_add_u32 v11, 3072, v8
    """)
    a(f"""
    v_lshrrev_b32 v5, 5, v2
    v_mul_u32_u24 v5, {96*16}, v5
    v_lshl_add_u32 v5, v4, 4, v5
    s_mul_i32 s21, s17, {2*96*16}
    s_add_u32 s21, s21, s20
    s_add_u32 s21, s21, {KF_OFF - 31*16}
    v_add_u32 v12, s21, v5
    """)
    for i in range(32):
        a(f"v_mov_b32 v{64+i}, 0")
    a(f"""
    s_waitcnt vmcnt(0)
    s_barrier
    """)
    NSET = 3
    SETB = 100

    def cv_reads(dl):
        st = SETB + 20 * (dl % NSET)
        off = 64 * (63 - dl)
        base = 8 + off // 1024
        o = (off % 1024) // 4
        a(f"ds_read2_b32 v[{st}:{st+1}], v{base} offset0:{o} offset1:{o+1}")
        a(f"ds_read2_b32 v[{st+2}:{st+3}], v{base} offset0:{o+2} offset1:{o+3}")
        n = 2
        for c in ((1, 0) if dl < 32 else (1,)):
            for hl in range(2):
                r = st + 4 + 8 * c + 4 * hl
                a(f"ds_read_b128 v[{r}:{r+3}], v12 offset:{16*(63-dl) + 512*c + 6144*hl}")
                n += 1
        return n

    cnt = {}
    cnt[0] = cv_reads(0)
    cnt[1] = cv_reads(1)
    for dl in range(64):
        if dl + 2 < 64:
            cnt[dl + 2] = cv_reads(dl + 2)
        pend = sum(cnt[x] for x in (dl + 1, dl + 2) if x < 64)
        a(f"s_waitcnt lgkmcnt({pend})")
        st = SETB + 20 * (dl % NSET)
        for c in ((1, 0) if dl < 32 else (1,)):
            for hl in range(2):
                r = st + 4 + 8 * c + 4 * hl
                acc = 64 + 16 * c
                a(f"v_mfma_f32_32x32x16_bf16 v[{acc}:{acc+15}], v[{st}:{st+3}], v[{r}:{r+3}], v[{acc}:{acc+15}]")
    RED = 2 * IMG_STRIDE
    a(f"""
    s_lshl_b32 s21, s3, 12
    s_add_u32 s21, s21, {RED}
    v_add_u32 v5, s21, v3
    s_xor_b32 s21, s3, 1
    s_lshl_b32 s21, s21, 12
    s_add_u32 s21, s21, {RED}
    v_add_u32 v6, s21, v3
    s_nop 7
    s_cmp_eq_u32 s17, 0
    s_cbranch_scc1 k2_cv_sp0
    """)
    for g in range(4):
        a(f"ds_write_b128 v5, v[{64+4*g}:{67+4*g}] offset:{1024*g}")
    a("s_nop 1")
    for i in range(16):
        a(f"v_mov_b32 v{64+i}, v{80+i}")
    a("s_branch k2_cv_join")
    a.label("k2_cv_sp0")
    for g in range(4):
        a(f"ds_write_b128 v5, v[{80+4*g}:{83+4*g}] offset:{1024*g}")
    a.label("k2_cv_join")
    a(f"""
    s_waitcnt lgkmcnt(0)
    s_barrier
    """)
    for g in range(4):
        a(f"ds_read_b128 v[{100+4*g}:{103+4*g}], v6 offset:{1024*g}")
    a(f"""
    v_lshlrev_b32 v5, 6, v4
    v_lshrrev_b32 v7, 5, v2
    v_lshl_add_u32 v5, v7, 3, v5
    s_lshl_b32 s21, s18, 12
    s_lshl_b32 s22, s17, 11
    s_add_u32 s21, s21, s22
    s_add_u32 s21, s21, {YT}
    s_waitcnt lgkmcnt(0)
    """)
    for g in range(4):
        for r in range(4):
            a(f"v_add_f32 v{64+4*g+r}, v{64+4*g+r}, v{100+4*g+r}")
        a(f"""
        v_cvt_pk_bf16_f32 v{120+2*g}, v{64+4*g}, v{65+4*g}
        v_cvt_pk_bf16_f32 v{121+2*g}, v{66+4*g}, v{67+4*g}
        buffer_store_dwordx2 v[{120+2*g}:{121+2*g}], v5, s[80:83], s21 offen offset:{16*g}
        """)
    a("s_endpgm")

    a.label("k2_gemm")
    a(f"""
    s_sub_u32 s16, s2, {K2_CV}
    s_and_b32 s17, s16, 15
    s_lshr_b32 s18, s16, 4
    s_lshl_b32 s19, s18, 2
    s_add_u32 s19, s19, s3
    s_lshl_b32 s20, s17, 2
    s_add_u32 s21, s20, s3
    s_lshl_b32 s22, s19, 16
    s_add_u32 s22, s22, {WGF}
    s_add_u32 s23, s22, 32768
    s_lshl_b32 s24, s21, 15
    s_add_u32 s24, s24, {XNF}
    s_mul_i32 s25, s3, 6144
    v_add_u32 v4, s25, v3
    v_add_u32 v5, 24576, v4
    v_add_u32 v6, 49152, v4
    v_add_u32 v7, 24576, v3
    v_add_u32 v8, 49152, v3
    """)
    vA = [4, 5, 6]
    vB = [3, 7, 8]

    def g1_dma(st):
        b = st % 3
        a(f"""
        s_add_u32 s26, s25, {b*24576}
        s_mov_b32 m0, s26
        s_add_u32 s26, s26, 2048
        buffer_load_dwordx4 v3, s[80:83], s22 offen lds
        buffer_load_dwordx4 v3, s[80:83], s22 offen offset:1024 lds
        s_mov_b32 m0, s26
        s_add_u32 s26, s26, 2048
        buffer_load_dwordx4 v3, s[80:83], s23 offen lds
        buffer_load_dwordx4 v3, s[80:83], s23 offen offset:1024 lds
        s_mov_b32 m0, s26
        s_add_u32 s22, s22, 2048
        buffer_load_dwordx4 v3, s[80:83], s24 offen lds
        buffer_load_dwordx4 v3, s[80:83], s24 offen offset:1024 lds
        s_add_u32 s23, s23, 2048
        s_add_u32 s24, s24, 2048
        """)

    g1_dma(0)
    g1_dma(1)
    ACC = 128
    for i in range(128):
        a(f"v_mov_b32 v{ACC+i}, 0")
    FR = 16
    for st in range(16):
        b = st % 3
        a(f"s_waitcnt vmcnt({6 if st < 15 else 0})")
        a("s_barrier")
        if st + 2 < 16:
            g1_dma(st + 2)
        for ks in range(2):
            f = FR + 24 * ks
            a(f"ds_read_b128 v[{f}:{f+3}], v{vA[b]} offset:{1024*ks}")
            a(f"ds_read_b128 v[{f+8}:{f+11}], v{vB[b]} offset:{4096 + 1024*ks}")
            a(f"ds_read_b128 v[{f+4}:{f+7}], v{vA[b]} offset:{2048 + 1024*ks}")
            for t in range(1, 4):
                a(f"ds_read_b128 v[{f+8+4*t}:{f+11+4*t}], v{vB[b]} offset:{6144*t + 4096 + 1024*ks}")
        for ks in range(2):
            f = FR + 24 * ks
            a(f"s_waitcnt lgkmcnt({6 if ks == 0 else 0})")
            for t in range(4):
                for gu in range(2):
                    acc = ACC + 64 * gu + 16 * t
                    a(f"v_mfma_f32_32x32x16_bf16 v[{acc}:{acc+15}], v[{f+4*gu}:{f+4*gu+3}], v[{f+8+4*t}:{f+11+4*t}], v[{acc}:{acc+15}]")
    K0 = hx(f2u(-2.0 * 0.7978845608028654 * L2E))
    K1c = hx(f2u(-2.0 * 0.7978845608028654 * 0.044715 * L2E))
    a(f"""
    s_mov_b32 s26, {K0}
    s_mov_b32 s27, {K1c}
    s_mul_i32 s28, s20, {112*1024}
    s_lshl_b32 s29, s19, 11
    s_add_u32 s28, s28, s29
    s_add_u32 s28, s28, {HF}
    s_nop 7
    """)
    for t in range(4):
        for half in range(2):
            o = 16 + 4 * ((2 * t + half) % 4)
            for i in range(4):
                g0 = ACC + 16 * t + 8 * half + 2 * i
                u0 = g0 + 64
                a(f"""
                v_cvt_pk_bf16_f32 v40, v{g0}, v{g0+1}
                v_cvt_pk_bf16_f32 v41, v{u0}, v{u0+1}
                v_lshlrev_b32 v42, 16, v40
                v_and_b32 v43, 0xffff0000, v40
                v_mul_f32 v44, v42, v42
                v_mul_f32 v45, v43, v43
                v_mov_b32 v46, s26
                v_mov_b32 v47, s26
                v_fmac_f32 v46, s27, v44
                v_fmac_f32 v47, s27, v45
                v_mul_f32 v46, v46, v42
                v_mul_f32 v47, v47, v43
                v_exp_f32 v46, v46
                v_exp_f32 v47, v47
                v_lshlrev_b32 v44, 16, v41
                v_and_b32 v45, 0xffff0000, v41
                v_add_f32 v46, 1.0, v46
                v_add_f32 v47, 1.0, v47
                v_rcp_f32 v46, v46
                v_rcp_f32 v47, v47
                s_nop 0
                v_mul_f32 v46, v46, v42
                v_mul_f32 v47, v47, v43
                v_cvt_pk_bf16_f32 v46, v46, v47
                v_lshlrev_b32 v42, 16, v46
                v_and_b32 v43, 0xffff0000, v46
                v_mul_f32 v42, v42, v44
                v_mul_f32 v43, v43, v45
                v_cvt_pk_bf16_f32 v{o+i}, v42, v43
                """)
            a(f"buffer_store_dwordx4 v[{o}:{o+3}], v3, s[80:83], s28 offen offset:{1024*half}")
        a(f"s_add_u32 s28, s28, {112*1024}")
    a.label("k2_end")
    a("s_endpgm")


K3_TOTAL = 256
K3_LDS = 65536


def gen_k3():
    a.raw(".text")
    a.raw(".globl k3_kernel")
    a.raw(".p2align 8")
    a.raw(".type k3_kernel,@function")
    a.label("k3_kernel")
    a(f"""
    s_cmp_ge_u32 s2, {K3_TOTAL}
    s_cbranch_scc1 k3_end
    s_load_dwordx2 s[14:15], s[0:1], 104
    s_load_dwordx2 s[4:5], s[0:1], 0
    s_load_dwordx2 s[6:7], s[0:1], 48
    s_load_dwordx2 s[8:9], s[0:1], 88
    v_lshrrev_b32 v1, 6, v0
    v_and_b32 v2, 63, v0
    v_readfirstlane_b32 s3, v1
    v_lshlrev_b32 v3, 4, v2
    s_and_b32 s16, s2, 7
    s_lshr_b32 s17, s2, 3
    s_waitcnt lgkmcnt(0)
    """)
    ws_srd(80)
    a(f"""
    s_mov_b32 s84, s4
    s_and_b32 s85, s5, 0xffff
    s_mov_b32 s86, 0x200000
    s_mov_b32 s87, 0x00020000
    s_mov_b32 s88, s6
    s_and_b32 s89, s7, 0xffff
    s_mov_b32 s90, 1024
    s_mov_b32 s91, 0x00020000
    s_mov_b32 s92, s8
    s_and_b32 s93, s9, 0xffff
    s_mov_b32 s94, 0x200000
    s_mov_b32 s95, 0x00020000
    s_mul_i32 s18, s3, {28*1024}
    s_mul_i32 s20, s16, {2*112*1024}
    s_add_u32 s20, s20, s18
    s_add_u32 s20, s20, {WDF}
    s_add_u32 s21, s20, {112*1024}
    s_mul_i32 s22, s17, {2*112*1024}
    s_add_u32 s22, s22, s18
    s_add_u32 s22, s22, {HF}
    s_add_u32 s23, s22, {112*1024}
    """)
    PD = 6
    FB = 96

    def ld(ks):
        f = FB + 16 * (ks % PD)
        o = 1024 * (ks % 4)
        a(f"""
        buffer_load_dwordx4 v[{f}:{f+3}], v3, s[80:83], s20 offen offset:{o}
        buffer_load_dwordx4 v[{f+8}:{f+11}], v3, s[80:83], s22 offen offset:{o}
        buffer_load_dwordx4 v[{f+4}:{f+7}], v3, s[80:83], s21 offen offset:{o}
        buffer_load_dwordx4 v[{f+12}:{f+15}], v3, s[80:83], s23 offen offset:{o}
        """)
        if ks % 4 == 3:
            a(f"""
            s_add_u32 s20, s20, 4096
            s_add_u32 s21, s21, 4096
            s_add_u32 s22, s22, 4096
            s_add_u32 s23, s23, 4096
            """)

    for ks in range(PD):
        ld(ks)
    a(f"""
    s_lshr_b32 s24, s3, 1
    s_and_b32 s25, s3, 1
    s_lshl_b32 s26, s16, 1
    s_add_u32 s26, s26, s24
    s_lshl_b32 s27, s17, 1
    s_add_u32 s27, s27, s25
    v_and_b32 v4, 31, v2
    v_lshrrev_b32 v5, 5, v2
    v_lshlrev_b32 v6, 10, v4
    v_lshl_add_u32 v6, v5, 3, v6
    s_lshl_b32 s28, s27, 15
    s_lshl_b32 s29, s26, 6
    s_add_u32 s28, s28, s29
    v_lshlrev_b32 v7, 4, v4
    v_lshl_add_u32 v7, v5, 3, v7
    s_lshl_b32 s30, s27, 15
    s_lshl_b32 s31, s26, 11
    s_add_u32 s30, s30, s31
    s_add_u32 s30, s30, {XNF}
    v_lshlrev_b32 v8, 3, v5
    v_lshlrev_b32 v9, 14, v5
    v_lshl_add_u32 v9, v4, 1, v9
    s_lshl_b32 s32, s26, 17
    s_lshl_b32 s33, s27, 6
    s_add_u32 s32, s32, s33
    s_add_u32 s32, s32, {YT}
    """)
    for g in range(4):
        a(f"buffer_load_dwordx2 v[{10+2*g}:{11+2*g}], v6, s[84:87], s28 offen offset:{16*g}")
        a(f"buffer_load_dwordx2 v[{18+2*g}:{19+2*g}], v7, s[80:83], s30 offen offset:{(g>>1)*1024 + (g&1)*512}")
        a(f"buffer_load_dwordx2 v[{26+2*g}:{27+2*g}], v8, s[88:91], s29 offen offset:{16*g}")
    for g in range(4):
        for r in range(4):
            if r == 0:
                a(f"s_add_u32 s33, s32, {8*g*4096}")
            else:
                a(f"s_add_u32 s33, s33, 4096")
            a(f"buffer_load_ushort v{34+4*g+r}, v9, s[80:83], s33 offen")
    NEP = 28
    ACC = 192
    for i in range(64):
        a(f"v_mov_b32 v{ACC+i}, 0")
    for ks in range(28):
        later_sets = min(ks + PD - 1, 27) - ks
        n = 4 * later_sets + (NEP if ks < PD else 0)
        if n > 63:
            n = 63
        a(f"s_waitcnt vmcnt({n})")
        f = FB + 16 * (ks % PD)
        for ta in range(2):
            for tb in range(2):
                acc = ACC + 16 * (2 * ta + tb)
                a(f"v_mfma_f32_32x32x16_bf16 v[{acc}:{acc+15}], v[{f+4*ta}:{f+4*ta+3}], v[{f+8+4*tb}:{f+11+4*tb}], v[{acc}:{acc+15}]")
        if ks + PD < 28:
            ld(ks + PD)
    a(f"""
    s_lshl_b32 s34, s3, 14
    v_add_u32 v50, s34, v3
    s_lshl_b32 s34, s3, 12
    v_add_u32 v51, s34, v3
    s_nop 7
    """)
    for t in range(4):
        for g in range(4):
            a(f"ds_write_b128 v50, v[{ACC+16*t+4*g}:{ACC+16*t+4*g+3}] offset:{4096*t + 1024*g}")
    a(f"""
    s_waitcnt lgkmcnt(0)
    s_barrier
    """)
    for w in range(4):
        for g in range(4):
            a(f"ds_read_b128 v[{96+16*w+4*g}:{96+16*w+4*g+3}], v51 offset:{16384*w + 1024*g}")
    a(f"""
    s_mov_b32 s34, {hx(L2E_HI | 0x80000000)}
    s_waitcnt lgkmcnt(0)
    """)
    for i in range(16):
        a(f"""
        v_add_f32 v{96+i}, v{96+i}, v{112+i}
        v_add_f32 v{128+i}, v{128+i}, v{144+i}
        """)
    for i in range(16):
        a(f"v_add_f32 v{96+i}, v{96+i}, v{128+i}")
    a("s_waitcnt vmcnt(0)")
    for g in range(4):
        for p in range(2):
            c0 = 96 + 4 * g + 2 * p
            xr = 10 + 2 * g + p
            nr = 18 + 2 * g + p
            dr = 26 + 2 * g + p
            y0 = 34 + 4 * g + 2 * p
            a(f"""
            v_cvt_pk_bf16_f32 v52, v{c0}, v{c0+1}
            v_lshlrev_b32 v53, 16, v52
            v_and_b32 v54, 0xffff0000, v52
            v_mul_f32 v55, s34, v53
            v_mul_f32 v56, s34, v54
            v_exp_f32 v55, v55
            v_exp_f32 v56, v56
            v_lshlrev_b32 v57, 16, v{nr}
            v_and_b32 v58, 0xffff0000, v{nr}
            v_lshlrev_b32 v59, 16, v{dr}
            v_and_b32 v60, 0xffff0000, v{dr}
            v_add_f32 v55, 1.0, v55
            v_add_f32 v56, 1.0, v56
            v_rcp_f32 v55, v55
            v_rcp_f32 v56, v56
            v_mul_f32 v57, v57, v59
            v_mul_f32 v58, v58, v60
            v_mul_f32 v55, v55, v53
            v_mul_f32 v56, v56, v54
            v_cvt_pk_bf16_f32 v57, v57, v58
            v_cvt_pk_bf16_f32 v55, v55, v56
            v_lshlrev_b32 v59, 16, v{y0}
            v_lshlrev_b32 v60, 16, v{y0+1}
            v_and_b32 v58, 0xffff0000, v57
            v_lshlrev_b32 v57, 16, v57
            v_add_f32 v57, v57, v59
            v_add_f32 v58, v58, v60
            v_cvt_pk_bf16_f32 v57, v57, v58
            v_and_b32 v56, 0xffff0000, v55
            v_lshlrev_b32 v55, 16, v55
            v_and_b32 v58, 0xffff0000, v57
            v_lshlrev_b32 v57, 16, v57
            v_mul_f32 v57, v57, v55
            v_mul_f32 v58, v58, v56
            v_cvt_pk_bf16_f32 v57, v57, v58
            v_lshlrev_b32 v59, 16, v{xr}
            v_and_b32 v60, 0xffff0000, v{xr}
            v_and_b32 v58, 0xffff0000, v57
            v_lshlrev_b32 v57, 16, v57
            v_add_f32 v57, v57, v59
            v_add_f32 v58, v58, v60
            v_cvt_pk_bf16_f32 v{64+2*g+p}, v57, v58
            """)
        a(f"buffer_store_dwordx2 v[{64+2*g}:{65+2*g}], v6, s[92:95], s28 offen offset:{16*g}")
    a.label("k3_end")
    a("s_endpgm")


def descriptor(name, vgpr):
    a.raw(f""".amdhsa_kernel {name}
  .amdhsa_next_free_vgpr {vgpr}
  .amdhsa_next_free_sgpr 102
  .amdhsa_accum_offset {((vgpr+3)//4)*4}
  .amdhsa_group_segment_fixed_size 0
  .amdhsa_kernarg_size 112
  .amdhsa_user_sgpr_count 2
  .amdhsa_user_sgpr_kernarg_segment_ptr 1
  .amdhsa_system_sgpr_workgroup_id_x 1
.end_amdhsa_kernel""")


def main():
    hdr = open(f"cdna_kernels/{NAME}.s.ref").read().split("\n")
    keep = []
    for ln in hdr:
        if not ln.startswith(";"):
            break
        if "@launch" in ln or "Override launch" in ln or "grid=ceil" in ln:
            continue
        keep.append(ln)
    out = "\n".join(keep) + "\n"
    out += f"; @launch kernel=k1_kernel grid=({K1_TOTAL},1,1) block=(256,1,1) lds=16384\n"
    out += f"; @launch kernel=k2_kernel grid=({K2_TOTAL},1,1) block=(256,1,1) lds={K2_LDS}\n"
    out += f"; @launch kernel=k3_kernel grid=({K3_TOTAL},1,1) block=(256,1,1) lds={K3_LDS}\n"
    out += '.amdgcn_target "amdgcn-amd-amdhsa--gfx950"\n'
    gen_k1()
    gen_k2()
    gen_k3()
    a.raw('.section .rodata,"a"')
    a.raw(".p2align 6")
    descriptor("k1_kernel", 176)
    a.raw(".p2align 6")
    descriptor("k2_kernel", 256)
    a.raw(".p2align 6")
    descriptor("k3_kernel", 256)
    out += a.text()
    path = sys.argv[1] if len(sys.argv) > 1 else f"cdna_kernels/{NAME}.s"
    open(path, "w").write(out)
    print("wrote", path, len(out), "bytes")


main()
```

```python
import struct, sys
import numpy as np

NAME = "recurrent_scan__ssm_conv_s4d__geglu_ffn__prompt"


def f2u(x):
    return struct.unpack("<I", struct.pack("<f", np.float32(x)))[0]


def hx(x):
    return "0x%08x" % (x & 0xFFFFFFFF)


L2E = 1.4426950408889634
L2E_HI = f2u(L2E)
L2E_LO = f2u(L2E - float(np.float32(L2E)))
I2P = 0.15915494309189535
I2P_HI = f2u(I2P)
I2P_LO = f2u(I2P - float(np.float32(I2P)))
LN2 = f2u(0.6931471805599453)

XNF = 0x0
IMG = 0x200000
IMG_STRIDE = 21504
UR_O = 4160
KF_OFF = 9216
WGF = 0xC80000
WDF = 0x1000000
HF = 0x1200000
YT = 0x1900000
WS_SIZE = 0x1B00000


class Asm:
    def __init__(self):
        self.lines = []

    def __call__(self, s):
        for ln in s.strip("\n").split("\n"):
            ln = ln.strip()
            if ln:
                self.lines.append("    " + ln)

    def label(self, l):
        self.lines.append(l + ":")

    def raw(self, s):
        self.lines.append(s)

    def text(self):
        return "\n".join(self.lines) + "\n"


a = Asm()
import os
SKIP = os.environ.get("SKIP", "").split(",")
STAMPS = os.environ.get("STAMPS", "") != ""
STAMP_BASE = 0x1B00000
if STAMPS:
    WS_SIZE = 0x1C00000
SREG = [170]


def stamp(i):
    if not STAMPS:
        return
    a(f"""
    s_memtime s[100:101]
    s_waitcnt lgkmcnt(0)
    v_writelane_b32 v{SREG[0]}, s100, {i}
    """)
    if i == 0:
        a(f"""
        s_memrealtime s[100:101]
        s_waitcnt lgkmcnt(0)
        v_writelane_b32 v{SREG[0]}, s100, 5
        """)


def stamp_flush(kid):
    if not STAMPS:
        return
    a(f"""
    s_memtime s[100:101]
    s_waitcnt lgkmcnt(0)
    v_writelane_b32 v{SREG[0]}, s100, 7
    s_memrealtime s[100:101]
    s_waitcnt lgkmcnt(0)
    v_writelane_b32 v{SREG[0]}, s100, 6
    s_lshl_b32 s100, s2, 3
    s_add_u32 s100, s100, s3
    s_lshl_b32 s100, s100, 5
    s_add_u32 s100, s100, {STAMP_BASE + kid*0x40000}
    v_lshlrev_b32 v{SREG[0]+1}, 2, v2
    v_cmp_gt_u32 vcc, 8, v2
    s_and_saveexec_b64 s[98:99], vcc
    buffer_store_dword v{SREG[0]}, v{SREG[0]+1}, s[80:83], s100 offen
    s_mov_b64 exec, s[98:99]
    """)

K1_KG = 512
K1_LN = 64
K1_SG = 224
K1_SD = 112
K1_TOTAL = K1_KG + K1_LN + K1_SG + K1_SD


def ws_srd(dst, base_lo=14, base_hi=15):
    a(f"""
    s_mov_b32 s{dst}, s{base_lo}
    s_and_b32 s{dst+1}, s{base_hi}, 0xffff
    s_mov_b32 s{dst+2}, {hx(WS_SIZE)}
    s_mov_b32 s{dst+3}, 0x00020000
    """)


def gen_k1():
    a.raw(".text")
    a.raw(".globl k1_kernel")
    a.raw(".p2align 8")
    a.raw(".type k1_kernel,@function")
    a.label("k1_kernel")
    a(f"""
    s_cmp_ge_u32 s2, {K1_TOTAL}
    s_cbranch_scc1 k1_end
    s_load_dwordx2 s[14:15], s[0:1], 104
    v_lshrrev_b32 v1, 6, v0
    v_and_b32 v2, 63, v0
    v_readfirstlane_b32 s3, v1
    s_cmp_lt_u32 s2, {K1_KG}
    s_cbranch_scc1 k1_kgen
    s_cmp_lt_u32 s2, {K1_KG + K1_LN}
    s_cbranch_scc1 k1_ln
    s_cmp_lt_u32 s2, {K1_KG + K1_LN + K1_SG}
    s_cbranch_scc1 k1_shg
    s_branch k1_shd
    """)
    a.label("k1_kgen")
    if "kgen" in SKIP: a("s_endpgm")
    SREG[0] = 38
    stamp(0)
    a(f"""
    s_load_dwordx8 s[4:11], s[0:1], 8
    s_load_dwordx2 s[12:13], s[0:1], 40
    v_and_b32 v3, 31, v2
    s_lshl_b32 s84, s2, 8
    s_lshl_b32 s85, s3, 6
    s_add_u32 s84, s84, s85
    v_lshlrev_b32 v9, 1, v3
    v_add_u32 v9, s84, v9
    s_waitcnt lgkmcnt(0)
    """)
    ws_srd(80)
    for i in range(4):
        a(f"""
        s_mov_b32 s{16+4*i}, s{4+2*i}
        s_and_b32 s{17+4*i}, s{5+2*i}, 0xffff
        s_mov_b32 s{18+4*i}, 131072
        s_mov_b32 s{19+4*i}, 0x00020000
        """)
    a(f"""
    s_lshr_b32 s85, s2, 1
    s_lshl_b32 s85, s85, 2
    s_add_u32 s12, s12, s85
    s_addc_u32 s13, s13, 0
    s_load_dword s86, s[12:13], 0
    buffer_load_ushort v10, v9, s[16:19], 0 offen
    buffer_load_ushort v11, v9, s[20:23], 0 offen
    buffer_load_ushort v12, v9, s[24:27], 0 offen
    buffer_load_ushort v13, v9, s[28:31], 0 offen
    s_mov_b32 s88, {hx(L2E_HI)}
    s_mov_b32 s89, {hx(L2E_LO)}
    s_mov_b32 s90, {hx(I2P_HI)}
    s_mov_b32 s91, {hx(I2P_LO)}
    v_lshlrev_b32 v20, 1, v3
    v_add_u32 v20, 240, v20
    v_subrev_u32 v21, 12, v3
    v_lshrrev_b32 v22, 1, v21
    v_lshlrev_b32 v22, 8, v22
    v_and_b32 v21, 1, v21
    v_lshlrev_b32 v21, 2, v21
    v_add_u32 v21, v21, v22
    v_add_u32 v21, 512, v21
    v_subrev_u32 v22, 12, v3
    v_lshlrev_b32 v22, 8, v22
    v_mov_b32 v23, 0
    v_mov_b32 v5, v3
    v_cmp_le_u32 vcc, 8, v3
    s_nop 1
    v_cndmask_b32 v5, v5, v20, vcc
    v_cmp_le_u32 vcc, 12, v3
    s_nop 1
    v_cndmask_b32 v5, v5, v21, vcc
    v_cmp_le_u32 vcc, 16, v3
    s_nop 1
    v_cndmask_b32 v5, v5, v22, vcc
    v_cmp_le_u32 vcc, 21, v3
    s_nop 1
    v_cndmask_b32 v5, v5, v23, vcc
    v_cvt_f32_u32 v5, v5
    v_lshlrev_b32 v6, 3, v3
    v_cvt_f32_u32 v6, v6
    s_mul_i32 s87, s3, 640
    s_add_u32 s87, s87, 16384
    v_lshlrev_b32 v4, 2, v3
    v_add_u32 v4, s87, v4
    v_lshrrev_b32 v9, 5, v2
    v_lshlrev_b32 v9, 4, v9
    v_add_u32 v9, s87, v9
    """)
    for i in range(16):
        a(f"v_mov_b32 v{80+i}, 0")
    a(f"""
    s_waitcnt lgkmcnt(0)
    s_lshr_b32 s87, s86, 16
    s_and_b32 s86, s86, 0xffff
    s_bitcmp1_b32 s2, 0
    s_cselect_b32 s86, s87, s86
    s_lshl_b32 s86, s86, 16
    v_mov_b32 v24, s86
    v_mul_f32 v14, s88, v24
    v_fma_f32 v15, v24, s88, -v14
    v_fma_f32 v15, v24, s89, v15
    v_exp_f32 v16, v14
    v_mul_f32 v15, {hx(LN2)}, v15
    s_nop 0
    v_fma_f32 v16, v16, v15, v16
    v_cvt_pk_bf16_f32 v16, v16, v16
    v_lshlrev_b32 v7, 16, v16
    v_add_f32 v8, v7, v7
    s_waitcnt vmcnt(0)
    v_lshlrev_b32 v10, 16, v10
    v_lshlrev_b32 v11, 16, v11
    v_lshlrev_b32 v12, 16, v12
    v_lshlrev_b32 v13, 16, v13
    v_mul_f32 v14, s88, v10
    v_fma_f32 v15, v10, s88, -v14
    v_fma_f32 v15, v10, s89, v15
    v_exp_f32 v16, v14
    v_mul_f32 v15, {hx(LN2)}, v15
    v_mul_f32 v11, v11, v7
    v_fma_f32 v16, v16, v15, v16
    v_mul_f32 v18, s90, v11
    v_cvt_pk_bf16_f32 v16, v16, v16
    v_fma_f32 v19, v11, s90, -v18
    v_lshlrev_b32 v16, 16, v16
    v_fma_f32 v19, v11, s91, v19
    v_mul_f32 v16, v16, v7
    v_mul_f32 v20, v12, v8
    v_mul_f32 v21, v13, v8
    v_mul_f32 v17, {hx(L2E_HI | 0x80000000)}, v16
    ds_write_b32 v4, v18 offset:128
    ds_write_b32 v4, v19 offset:256
    ds_write_b32 v4, v20 offset:384
    ds_write_b32 v4, v21 offset:512
    ds_write_b32 v4, v17 offset:0
    s_waitcnt lgkmcnt(0)
    """)
    stamp(1)

    def kg_read(g):
        pb = 40 + 20 * (g % 2)
        for p in range(5):
            a(f"ds_read_b128 v[{pb+4*p}:{pb+4*p+3}], v9 offset:{128*p + 32*g}")

    kg_read(0)
    for g in range(4):
        if g + 1 < 4:
            kg_read(g + 1)
            a("s_waitcnt lgkmcnt(5)")
        else:
            a("s_waitcnt lgkmcnt(0)")
        pb = 40 + 20 * (g % 2)
        for pair in range(2):
            stages = [[] for _ in range(16)]
            for m in range(2):
                i = 2 * pair + m
                ard2, whi, wlo, cr2, ci2 = (pb + 4 * p + i for p in range(5))
                t = 10 + 12 * m
                rA, rlA, eA, sA, cA, t1, t2, rB, rlB, eB, sB, cB = range(t, t + 12)
                Gr, nGi, Fr, Fi = 96 + 2 * i, 97 + 2 * i, 104 + 2 * i, 105 + 2 * i
                seq = [
                    [f"v_mul_f32 v{rA}, v{whi}, v5", f"v_mul_f32 v{rB}, v{whi}, v6"],
                    [f"v_mul_f32 v{eA}, v{ard2}, v5", f"v_mul_f32 v{eB}, v{ard2}, v6"],
                    [f"v_fma_f32 v{rlA}, v{whi}, v5, -v{rA}", f"v_fma_f32 v{rlB}, v{whi}, v6, -v{rB}"],
                    [f"v_exp_f32 v{eA}, v{eA}", f"v_exp_f32 v{eB}, v{eB}"],
                    [f"v_fma_f32 v{rlA}, v{wlo}, v5, v{rlA}", f"v_fma_f32 v{rlB}, v{wlo}, v6, v{rlB}"],
                    [f"v_fract_f32 v{rA}, v{rA}", f"v_fract_f32 v{rB}, v{rB}"],
                    [f"v_add_f32 v{rA}, v{rA}, v{rlA}", f"v_add_f32 v{rB}, v{rB}, v{rlB}"],
                    [f"v_sin_f32 v{sA}, v{rA}", f"v_cos_f32 v{cA}, v{rA}"],
                    [f"v_sin_f32 v{sB}, v{rB}", f"v_cos_f32 v{cB}, v{rB}"],
                    [f"v_mul_f32 v{t1}, v{ci2}, v{sA}", f"v_mul_f32 v{t2}, v{ci2}, v{cA}"],
                    [f"v_fma_f32 v{t1}, v{cr2}, v{cA}, -v{t1}", f"v_fma_f32 v{t2}, v{cr2}, v{sA}, v{t2}"],
                    [f"v_mul_f32 v{Fr}, v{eB}, v{cB}", f"v_mul_f32 v{Fi}, v{eB}, v{sB}"],
                    [f"v_mul_f32 v{Gr}, v{eA}, v{t1}", f"v_mul_f32_e64 v{nGi}, -v{eA}, v{t2}"],
                    [f"v_cvt_pk_bf16_f32 v{120+i}, v{Fr}, v{Fi}", f"v_cvt_pk_bf16_f32 v{112+i}, v{Gr}, v{nGi}"],
                    [f"v_lshlrev_b32 v{rA}, 16, v{120+i}", f"v_and_b32 v{rlA}, 0xffff0000, v{120+i}",
                     f"v_lshlrev_b32 v{rB}, 16, v{112+i}", f"v_and_b32 v{rlB}, 0xffff0000, v{112+i}"],
                    [f"v_sub_f32 v{Fr}, v{Fr}, v{rA}", f"v_sub_f32 v{Fi}, v{Fi}, v{rlA}",
                     f"v_sub_f32 v{Gr}, v{Gr}, v{rB}", f"v_sub_f32 v{nGi}, v{nGi}, v{rlB}",
                     f"v_cvt_pk_bf16_f32 v{124+i}, v{Fr}, v{Fi}", f"v_cvt_pk_bf16_f32 v{116+i}, v{Gr}, v{nGi}"],
                ]
                for k, st in enumerate(seq):
                    stages[k] += st
            for st in stages:
                for ins in st:
                    a(ins)
        a(f"""
        s_nop 1
        v_mfma_f32_32x32x16_bf16 v[80:95], v[112:115], v[120:123], v[80:95]
        v_mfma_f32_32x32x16_bf16 v[80:95], v[112:115], v[124:127], v[80:95]
        v_mfma_f32_32x32x16_bf16 v[80:95], v[116:119], v[120:123], v[80:95]
        """)
    stamp(2)
    a(f"""
    v_lshrrev_b32 v10, 5, v2
    v_lshlrev_b32 v10, 9, v10
    v_lshl_add_u32 v10, v3, 2, v10
    s_lshl_b32 s84, s3, 12
    v_add_u32 v10, s84, v10
    s_nop 10
    """)
    for g in range(4):
        for r in range(4):
            a(f"ds_write_b32 v10, v{80+4*g+r} offset:{1024*g+128*r}")
    a(f"""
    s_lshl_b32 s84, s3, 3
    v_lshlrev_b32 v9, 5, v2
    v_add_u32 v9, s84, v9
    """)
    for e in range(8):
        a(f"""
        v_add_u32 v10, {e}, v9
        v_cvt_f32_u32 v10, v10
        v_cvt_pk_bf16_f32 v10, v10, v10
        v_lshlrev_b32 v10, 16, v10
        v_cvt_u32_f32 v10, v10
        v_lshrrev_b32 v11, 8, v10
        v_and_b32 v12, 7, v10
        v_lshrrev_b32 v13, 1, v10
        v_and_b32 v13, 0x7c, v13
        v_lshrrev_b32 v14, 1, v12
        v_add_u32 v14, 8, v14
        v_lshrrev_b32 v15, 2, v12
        v_lshl_add_u32 v15, v11, 1, v15
        v_add_u32 v15, 8, v15
        v_add_u32 v16, 12, v11
        v_cmp_le_u32 vcc, 1, v11
        s_nop 1
        v_cndmask_b32 v12, v12, v14, vcc
        v_cmp_le_u32 vcc, 2, v11
        s_nop 1
        v_cndmask_b32 v12, v12, v15, vcc
        v_cmp_le_u32 vcc, 4, v11
        s_nop 1
        v_cndmask_b32 v12, v12, v16, vcc
        v_lshl_add_u32 v{100+e}, v12, 7, v13
        """)
    a(f"""
    s_waitcnt lgkmcnt(0)
    s_barrier
    """)
    stamp(3)
    for e in range(8):
        b = 40 + 4 * e
        a(f"""
        ds_read2st64_b32 v[{b}:{b+1}], v{100+e} offset0:0 offset1:16
        ds_read2st64_b32 v[{b+2}:{b+3}], v{100+e} offset0:32 offset1:48
        """)
    a(f"""
    s_mul_i32 s84, s2, {IMG_STRIDE}
    s_add_u32 s84, s84, {IMG + KF_OFF}
    s_mul_i32 s85, s3, {96*16}
    s_add_u32 s85, s85, s84
    s_add_u32 s86, s85, {4*96*16}
    v_lshlrev_b32 v10, 4, v2
    v_add_u32 v10, {32*16}, v10
    v_lshrrev_b32 v11, 5, v0
    v_mul_u32_u24 v11, {96*16}, v11
    v_and_b32 v12, 31, v0
    v_lshl_add_u32 v11, v12, 4, v11
    v_mov_b32 v28, 0
    v_mov_b32 v29, 0
    v_mov_b32 v30, 0
    v_mov_b32 v31, 0
    buffer_store_dwordx4 v[28:31], v11, s[80:83], s84 offen
    s_waitcnt lgkmcnt(0)
    """)
    for e in range(8):
        b = 40 + 4 * e
        a(f"""
        v_add_f32 v{b}, v{b}, v{b+1}
        v_add_f32 v{b+2}, v{b+2}, v{b+3}
        v_add_f32 v{b}, v{b}, v{b+2}
        """)
    for i in range(4):
        e0 = 40 + 8 * i
        e1 = 44 + 8 * i
        a(f"""
        v_cvt_pk_bf16_f32 v{20+i}, v{e0}, v{e1}
        v_lshlrev_b32 v12, 16, v{20+i}
        v_and_b32 v13, 0xffff0000, v{20+i}
        v_sub_f32 v12, v{e0}, v12
        v_sub_f32 v13, v{e1}, v13
        v_cvt_pk_bf16_f32 v{24+i}, v12, v13
        """)
    a(f"""
    buffer_store_dwordx4 v[20:23], v10, s[80:83], s85 offen
    buffer_store_dwordx4 v[24:27], v10, s[80:83], s86 offen
    """)
    stamp_flush(0)
    a("s_endpgm")

    a.label("k1_ln")
    if "ln" in SKIP: a("s_endpgm")
    SREG[0] = 126
    stamp(0)
    a(f"""
    s_load_dwordx2 s[4:5], s[0:1], 0
    s_sub_u32 s16, s2, {K1_KG}
    s_lshl_b32 s16, s16, 2
    s_add_u32 s16, s16, s3
    s_lshl_b32 s17, s16, 3
    s_lshl_b32 s18, s17, 10
    v_lshlrev_b32 v3, 4, v2
    s_waitcnt lgkmcnt(0)
    """)
    ws_srd(80)
    a(f"""
    s_mov_b32 s84, s4
    s_and_b32 s85, s5, 0xffff
    s_mov_b32 s86, 0x200000
    s_mov_b32 s87, 0x00020000
    """)
    for r in range(8):
        if r == 4:
            a("s_add_u32 s18, s18, 4096")
        a(f"buffer_load_dwordx4 v[{8+4*r}:{11+4*r}], v3, s[84:87], s18 offen offset:{(r%4)*1024}")

    def val(r, k):
        return 40 + 8 * r + k

    SUM = 104
    for r in range(8):
        a(f"s_waitcnt vmcnt({7-r})")
        for i in range(4):
            a(f"""
            v_lshlrev_b32 v{val(r,2*i)}, 16, v{8+4*r+i}
            v_and_b32 v{val(r,2*i+1)}, 0xffff0000, v{8+4*r+i}
            """)
        a(f"""
        v_pk_add_f32 v[4:5], v[{val(r,0)}:{val(r,1)}], v[{val(r,2)}:{val(r,3)}]
        v_pk_add_f32 v[6:7], v[{val(r,4)}:{val(r,5)}], v[{val(r,6)}:{val(r,7)}]
        v_pk_add_f32 v[4:5], v[4:5], v[6:7]
        v_add_f32 v{SUM+r}, v4, v5
        """)

    def dpp_reduce(base):
        for mod in ["row_shr:1 row_mask:0xf bank_mask:0xf bound_ctrl:0",
                    "row_shr:2 row_mask:0xf bank_mask:0xf bound_ctrl:0",
                    "row_shr:4 row_mask:0xf bank_mask:0xf bound_ctrl:0",
                    "row_shr:8 row_mask:0xf bank_mask:0xf bound_ctrl:0",
                    "row_bcast:15 row_mask:0xa bank_mask:0xf",
                    "row_bcast:31 row_mask:0xc bank_mask:0xf"]:
            for r in range(8):
                a(f"v_add_f32_dpp v{base+r}, v{base+r}, v{base+r} {mod}")

    stamp(1)
    a("s_nop 1")
    dpp_reduce(SUM)
    a("s_nop 1")
    for r in range(8):
        a(f"v_readlane_b32 s{20+r}, v{SUM+r}, 63")
    a("s_nop 1")
    inv512 = hx(f2u(1.0 / 512))
    for r in range(8):
        a(f"""
        v_mov_b32 v{8+4*r}, s{20+r}
        v_mul_f32 v{8+4*r}, {inv512}, v{8+4*r}
        """)
    for r in range(8):
        mu = 8 + 4 * r
        a(f"""
        v_pk_add_f32 v[4:5], v[{val(r,0)}:{val(r,1)}], v[{mu}:{mu+1}] op_sel_hi:[1,0] neg_lo:[0,1] neg_hi:[0,1]
        v_pk_add_f32 v[6:7], v[{val(r,2)}:{val(r,3)}], v[{mu}:{mu+1}] op_sel_hi:[1,0] neg_lo:[0,1] neg_hi:[0,1]
        v_pk_mul_f32 v[112:113], v[4:5], v[4:5]
        v_pk_mul_f32 v[114:115], v[6:7], v[6:7]
        v_pk_add_f32 v[4:5], v[{val(r,4)}:{val(r,5)}], v[{mu}:{mu+1}] op_sel_hi:[1,0] neg_lo:[0,1] neg_hi:[0,1]
        v_pk_add_f32 v[6:7], v[{val(r,6)}:{val(r,7)}], v[{mu}:{mu+1}] op_sel_hi:[1,0] neg_lo:[0,1] neg_hi:[0,1]
        v_pk_fma_f32 v[112:113], v[4:5], v[4:5], v[112:113]
        v_pk_fma_f32 v[114:115], v[6:7], v[6:7], v[114:115]
        v_pk_add_f32 v[112:113], v[112:113], v[114:115]
        v_add_f32 v{SUM+r}, v112, v113
        """)
    a("s_nop 1")
    dpp_reduce(SUM)
    a("s_nop 1")
    for r in range(8):
        a(f"v_readlane_b32 s{32+r}, v{SUM+r}, 63")
    a("s_nop 1")
    eps = hx(f2u(1e-5))
    RCP = [112, 114, 116, 118, 120, 122, 124, 6]
    for r in range(8):
        a(f"""
        v_mov_b32 v4, s{32+r}
        v_mul_f32 v4, {inv512}, v4
        v_cvt_pk_bf16_f32 v4, v4, v{8+4*r}
        v_and_b32 v{8+4*r}, 0xffff0000, v4
        v_lshlrev_b32 v4, 16, v4
        v_add_f32 v4, {eps}, v4
        v_cvt_pk_bf16_f32 v4, v4, v4
        v_lshlrev_b32 v4, 16, v4
        v_sqrt_f32 v4, v4
        s_nop 0
        v_cvt_pk_bf16_f32 v4, v4, v4
        v_lshlrev_b32 v{10+4*r}, 16, v4
        v_rcp_f32 v{RCP[r]}, v{10+4*r}
        """)
    stamp(2)
    a(f"""
    v_lshrrev_b32 v3, 1, v2
    v_lshlrev_b32 v3, 10, v3
    v_and_b32 v4, 1, v2
    v_lshl_add_u32 v3, v4, 9, v3
    s_lshr_b32 s19, s17, 5
    s_lshl_b32 s19, s19, 15
    s_and_b32 s18, s17, 31
    s_lshl_b32 s18, s18, 4
    s_add_u32 s18, s18, s19
    """)
    for r in range(8):
        mb, den, rc = 8 + 4 * r, 10 + 4 * r, RCP[r]
        o = 104 + 4 * (r % 2)
        for k in range(0, 8, 2):
            x0 = val(r, k)
            a(f"""
            v_pk_add_f32 v[4:5], v[{x0}:{x0+1}], v[{mb}:{mb+1}] op_sel_hi:[1,0] neg_lo:[0,1] neg_hi:[0,1]
            v_cvt_pk_bf16_f32 v4, v4, v5
            v_and_b32 v5, 0xffff0000, v4
            v_lshlrev_b32 v4, 16, v4
            v_pk_mul_f32 v[{x0}:{x0+1}], v[4:5], v[{rc}:{rc+1}] op_sel_hi:[1,0]
            v_pk_fma_f32 v[4:5], v[{x0}:{x0+1}], v[{den}:{den+1}], v[4:5] op_sel_hi:[1,0,1] neg_lo:[1,0,0] neg_hi:[1,0,0]
            v_pk_fma_f32 v[{x0}:{x0+1}], v[4:5], v[{rc}:{rc+1}], v[{x0}:{x0+1}] op_sel_hi:[1,0,1]
            v_cvt_pk_bf16_f32 v{o+k//2}, v{x0}, v{x0+1}
            """)
        a(f"buffer_store_dwordx4 v[{o}:{o+3}], v3, s[80:83], s18 offen offset:{16*r}")
    stamp_flush(0)
    a("s_endpgm")

    a.label("k1_shg")
    if "shg" in SKIP: a("s_endpgm")
    stamp(0)
    a(f"""
    s_load_dwordx4 s[4:7], s[0:1], 64
    s_sub_u32 s16, s2, {K1_KG + K1_LN}
    s_lshl_b32 s16, s16, 2
    s_add_u32 s16, s16, s3
    s_lshr_b32 s17, s16, 4
    s_lshr_b32 s18, s16, 3
    s_and_b32 s18, s18, 1
    s_and_b32 s19, s16, 7
    s_waitcnt lgkmcnt(0)
    """)
    ws_srd(80)
    a(f"""
    s_cmp_eq_u32 s18, 0
    s_cselect_b32 s84, s4, s6
    s_cselect_b32 s85, s5, s7
    s_and_b32 s85, s85, 0xffff
    s_mov_b32 s86, {512*1792*2}
    s_mov_b32 s87, 0x00020000
    v_lshrrev_b32 v3, 5, v2
    v_mul_u32_u24 v3, {8*3584}, v3
    v_and_b32 v4, 31, v2
    v_lshl_add_u32 v3, v4, 1, v3
    s_lshl_b32 s20, s17, 6
    v_add_u32 v3, s20, v3
    s_mul_i32 s20, s19, {64*3584}
    """)
    for fr in range(4):
        for e in range(8):
            a(f"""
            buffer_load_ushort v{10+8*fr+e}, v3, s[84:87], s20 offen
            s_add_u32 s20, s20, 3584
            """)
        a(f"s_add_u32 s20, s20, {8*3584}")
    a(f"""
    s_lshl_b32 s20, s17, 1
    s_add_u32 s20, s20, s18
    s_lshl_b32 s20, s20, 15
    s_lshl_b32 s21, s19, 12
    s_add_u32 s20, s20, s21
    s_add_u32 s20, s20, {WGF}
    v_lshlrev_b32 v4, 4, v2
    """)
    for fr in range(4):
        a(f"s_waitcnt vmcnt({24-8*fr})")
        for i in range(4):
            a(f"v_lshl_or_b32 v{50+4*fr+i}, v{10+8*fr+2*i+1}, 16, v{10+8*fr+2*i}")
        a(f"buffer_store_dwordx4 v[{50+4*fr}:{53+4*fr}], v4, s[80:83], s20 offen offset:{1024*fr}")
    stamp_flush(0)
    a("s_endpgm")

    a.label("k1_shd")
    if "shd" in SKIP: a("s_endpgm")
    stamp(0)
    a(f"""
    s_load_dwordx2 s[4:5], s[0:1], 80
    s_sub_u32 s16, s2, {K1_KG + K1_LN + K1_SG}
    s_lshl_b32 s16, s16, 2
    s_add_u32 s16, s16, s3
    s_lshr_b32 s17, s16, 4
    s_and_b32 s18, s16, 15
    s_waitcnt lgkmcnt(0)
    """)
    ws_srd(80)
    a(f"""
    s_mov_b32 s84, s4
    s_and_b32 s85, s5, 0xffff
    s_mov_b32 s86, {512*1792*2}
    s_mov_b32 s87, 0x00020000
    v_lshrrev_b32 v3, 5, v2
    v_lshlrev_b32 v3, 12, v3
    v_and_b32 v4, 31, v2
    v_lshl_add_u32 v3, v4, 1, v3
    s_lshl_b32 s20, s18, 6
    v_add_u32 v3, s20, v3
    s_lshl_b32 s20, s17, 16
    """)
    for fr in range(4):
        for e in range(8):
            f = 16 * fr + 8 * (e >> 2) + (e & 3)
            a(f"""
            s_add_u32 s21, s20, {f*1024}
            buffer_load_ushort v{10+8*fr+e}, v3, s[84:87], s21 offen
            """)
    a(f"""
    s_mul_i32 s20, s18, {112*1024}
    s_lshl_b32 s21, s17, 12
    s_add_u32 s20, s20, s21
    s_add_u32 s20, s20, {WDF}
    v_lshlrev_b32 v4, 4, v2
    """)
    for fr in range(4):
        a(f"s_waitcnt vmcnt({24-8*fr})")
        for i in range(4):
            a(f"v_lshl_or_b32 v{50+4*fr+i}, v{10+8*fr+2*i+1}, 16, v{10+8*fr+2*i}")
        a(f"buffer_store_dwordx4 v[{50+4*fr}:{53+4*fr}], v4, s[80:83], s20 offen offset:{1024*fr}")
    stamp_flush(0)
    a.label("k1_end")
    a("s_endpgm")


K2_CV = 256
K2_G1 = 224
K2_TOTAL = K2_CV + K2_G1
K2_LDS = 73728


def gen_k2():
    a.raw(".text")
    a.raw(".globl k2_kernel")
    a.raw(".p2align 8")
    a.raw(".type k2_kernel,@function")
    a.label("k2_kernel")
    a(f"""
    s_cmp_ge_u32 s2, {K2_TOTAL}
    s_cbranch_scc1 k2_end
    s_load_dwordx2 s[14:15], s[0:1], 104
    v_lshrrev_b32 v1, 6, v0
    v_and_b32 v2, 63, v0
    v_readfirstlane_b32 s3, v1
    v_lshlrev_b32 v3, 4, v2
    s_waitcnt lgkmcnt(0)
    """)
    ws_srd(80)
    a(f"""
    s_cmp_ge_u32 s2, {K2_CV}
    s_cbranch_scc1 k2_gemm
    """)
    if "conv" in SKIP: a("s_endpgm")
    SREG[0] = 200
    stamp(0)
    a(f"""
    s_lshr_b32 s16, s3, 1
    s_and_b32 s17, s3, 1
    s_lshl_b32 s18, s2, 1
    s_add_u32 s18, s18, s16
    s_mul_i32 s19, s18, {IMG_STRIDE}
    s_add_u32 s19, s19, {IMG + KF_OFF}
    s_mul_i32 s20, s16, {IMG_STRIDE}
    s_mul_i32 s21, s17, {6*1024}
    s_add_u32 s19, s19, s21
    s_add_u32 s21, s20, s21
    s_add_u32 s21, s21, {KF_OFF}
    """)
    a(f"""
    v_lshrrev_b32 v4, 5, v2
    v_lshlrev_b32 v4, 15, v4
    v_and_b32 v5, 31, v2
    v_lshl_add_u32 v4, v5, 4, v4
    s_lshr_b32 s22, s2, 2
    s_lshl_b32 s22, s22, 9
    s_and_b32 s23, s2, 3
    s_lshl_b32 s23, s23, 2
    s_add_u32 s22, s22, s23
    s_lshl_b32 s23, s3, 19
    s_add_u32 s22, s22, s23
    """)
    for i in range(8):
        a(f"buffer_load_dword v{20+i}, v4, s[80:83], s22 offen")
        if i < 7:
            a("s_add_u32 s22, s22, 65536")
    a(f"""
    s_mov_b32 m0, s21
    s_add_u32 s21, s21, 4096
    buffer_load_dwordx4 v3, s[80:83], s19 offen lds
    buffer_load_dwordx4 v3, s[80:83], s19 offen offset:1024 lds
    buffer_load_dwordx4 v3, s[80:83], s19 offen offset:2048 lds
    buffer_load_dwordx4 v3, s[80:83], s19 offen offset:3072 lds
    s_mov_b32 m0, s21
    s_add_u32 s19, s19, 4096
    buffer_load_dwordx4 v3, s[80:83], s19 offen lds
    buffer_load_dwordx4 v3, s[80:83], s19 offen offset:1024 lds
    """)
    a(f"""
    s_lshl_b32 s23, s3, 10
    s_sub_u32 s23, {4096 - 2*448}, s23
    v_lshlrev_b32 v5, 1, v2
    v_sub_u32 v5, s23, v5
    v_mov_b32 v6, 0
    v_add_u32 v7, {2*2049}, v3
    v_lshrrev_b32 v7, 3, v7
    v_lshlrev_b32 v7, 1, v2
    v_add_u32 v7, {2*2048}, v7
    """)
    a(f"""
    s_cmp_lg_u32 s3, 0
    s_cbranch_scc1 k2_cv_nozero
    v_cmp_gt_u32 vcc, 32, v2
    s_and_saveexec_b64 s[24:25], vcc
    ds_write_b16 v7, v6 offset:{UR_O}
    ds_write_b16 v7, v6 offset:{UR_O + IMG_STRIDE}
    v_cmp_gt_u32 vcc, 31, v2
    s_and_b64 exec, exec, vcc
    ds_write_b16 v7, v6 offset:2
    ds_write_b16 v7, v6 offset:{2 + IMG_STRIDE}
    s_mov_b64 exec, s[24:25]
    """)
    a.label("k2_cv_nozero")
    for i in range(8):
        a(f"s_waitcnt vmcnt({6 + 7 - i})")
        o = 128 * (7 - i)
        a(f"""
        ds_write_b16 v5, v{20+i} offset:{o}
        ds_write_b16 v5, v{20+i} offset:{o + UR_O - 2}
        ds_write_b16_d16_hi v5, v{20+i} offset:{o + IMG_STRIDE}
        ds_write_b16_d16_hi v5, v{20+i} offset:{o + IMG_STRIDE + UR_O - 2}
        """)
    a(f"""
    v_and_b32 v4, 31, v2
    v_lshrrev_b32 v5, 5, v2
    v_lshlrev_b32 v5, 3, v5
    v_sub_u32 v5, v5, v4
    v_lshlrev_b32 v5, 1, v5
    v_and_b32 v6, 1, v4
    v_mul_u32_u24 v6, {UR_O - 2}, v6
    v_add_u32 v5, v5, v6
    s_lshl_b32 s21, s17, 5
    s_add_u32 s21, s21, s20
    s_add_u32 s21, s21, {2*(2048 - 16*126)}
    v_add_u32 v8, s21, v5
    v_add_u32 v9, 1024, v8
    v_add_u32 v10, 2048, v8
    v_add_u32 v11, 3072, v8
    """)
    a(f"""
    v_lshrrev_b32 v5, 5, v2
    v_mul_u32_u24 v5, {96*16}, v5
    v_lshl_add_u32 v5, v4, 4, v5
    s_mul_i32 s21, s17, {2*96*16}
    s_add_u32 s21, s21, s20
    s_add_u32 s21, s21, {KF_OFF - 31*16}
    v_add_u32 v12, s21, v5
    """)
    for i in range(32):
        a(f"v_mov_b32 v{64+i}, 0")
    a(f"""
    s_waitcnt vmcnt(0) lgkmcnt(0)
    s_barrier
    """)
    stamp(1)
    NSET = 3
    SETB = 100

    def cv_reads(dl):
        st = SETB + 20 * (dl % NSET)
        off = 64 * (63 - dl)
        base = 8 + off // 1024
        o = (off % 1024) // 4
        a(f"ds_read2_b32 v[{st}:{st+1}], v{base} offset0:{o} offset1:{o+1}")
        a(f"ds_read2_b32 v[{st+2}:{st+3}], v{base} offset0:{o+2} offset1:{o+3}")
        n = 2
        for c in ((1, 0) if dl < 32 else (1,)):
            for hl in range(2):
                r = st + 4 + 8 * c + 4 * hl
                a(f"ds_read_b128 v[{r}:{r+3}], v12 offset:{16*(63-dl) + 512*c + 6144*hl}")
                n += 1
        return n

    cnt = {}
    cnt[0] = cv_reads(0)
    cnt[1] = cv_reads(1)
    for dl in range(64):
        if dl + 2 < 64:
            cnt[dl + 2] = cv_reads(dl + 2)
        pend = sum(cnt[x] for x in (dl + 1, dl + 2) if x < 64)
        a(f"s_waitcnt lgkmcnt({pend})")
        st = SETB + 20 * (dl % NSET)
        for c in ((1, 0) if dl < 32 else (1,)):
            for hl in range(2):
                r = st + 4 + 8 * c + 4 * hl
                acc = 64 + 16 * c
                a(f"v_mfma_f32_32x32x16_bf16 v[{acc}:{acc+15}], v[{st}:{st+3}], v[{r}:{r+3}], v[{acc}:{acc+15}]")
    stamp(2)
    RED = 2 * IMG_STRIDE
    a(f"""
    s_lshl_b32 s21, s3, 12
    s_add_u32 s21, s21, {RED}
    v_add_u32 v5, s21, v3
    s_xor_b32 s21, s3, 1
    s_lshl_b32 s21, s21, 12
    s_add_u32 s21, s21, {RED}
    v_add_u32 v6, s21, v3
    s_nop 7
    s_cmp_eq_u32 s17, 0
    s_cbranch_scc1 k2_cv_sp0
    """)
    for g in range(4):
        a(f"ds_write_b128 v5, v[{64+4*g}:{67+4*g}] offset:{1024*g}")
    a("s_nop 1")
    for i in range(16):
        a(f"v_mov_b32 v{64+i}, v{80+i}")
    a("s_branch k2_cv_join")
    a.label("k2_cv_sp0")
    for g in range(4):
        a(f"ds_write_b128 v5, v[{80+4*g}:{83+4*g}] offset:{1024*g}")
    a.label("k2_cv_join")
    a(f"""
    s_waitcnt lgkmcnt(0)
    s_barrier
    """)
    for g in range(4):
        a(f"ds_read_b128 v[{100+4*g}:{103+4*g}], v6 offset:{1024*g}")
    a(f"""
    v_lshlrev_b32 v5, 6, v4
    v_lshrrev_b32 v7, 5, v2
    v_lshl_add_u32 v5, v7, 3, v5
    s_lshl_b32 s21, s18, 12
    s_lshl_b32 s22, s17, 11
    s_add_u32 s21, s21, s22
    s_add_u32 s21, s21, {YT}
    s_waitcnt lgkmcnt(0)
    """)
    for g in range(4):
        for r in range(4):
            a(f"v_add_f32 v{64+4*g+r}, v{64+4*g+r}, v{100+4*g+r}")
        a(f"""
        v_cvt_pk_bf16_f32 v{120+2*g}, v{64+4*g}, v{65+4*g}
        v_cvt_pk_bf16_f32 v{121+2*g}, v{66+4*g}, v{67+4*g}
        buffer_store_dwordx2 v[{120+2*g}:{121+2*g}], v5, s[80:83], s21 offen offset:{16*g}
        """)
    stamp_flush(1)
    a("s_endpgm")

    a.label("k2_gemm")
    if "gemm1" in SKIP: a("s_endpgm")
    SREG[0] = 100
    stamp(0)
    a(f"""
    s_sub_u32 s16, s2, {K2_CV}
    s_and_b32 s17, s16, 15
    s_lshr_b32 s18, s16, 4
    s_lshl_b32 s19, s18, 2
    s_add_u32 s19, s19, s3
    s_lshl_b32 s20, s17, 2
    s_add_u32 s21, s20, s3
    s_lshl_b32 s22, s19, 16
    s_add_u32 s22, s22, {WGF}
    s_add_u32 s23, s22, 32768
    s_lshl_b32 s24, s21, 15
    s_add_u32 s24, s24, {XNF}
    s_mul_i32 s25, s3, 3072
    v_add_u32 v4, s25, v3
    v_add_u32 v5, {3*12288}, v4
    v_add_u32 v6, {3*12288}, v3
    """)
    NB = 6

    def dma_parts(k):
        b = k % NB
        return [
            f"""s_add_u32 s26, s25, {b*12288}
            s_mov_b32 m0, s26
            s_add_u32 s26, s26, 1024
            buffer_load_dwordx4 v3, s[80:83], s22 offen lds
            s_add_u32 s22, s22, 1024""",
            f"""s_mov_b32 m0, s26
            s_add_u32 s26, s26, 1024
            buffer_load_dwordx4 v3, s[80:83], s23 offen lds
            s_add_u32 s23, s23, 1024""",
            f"""s_mov_b32 m0, s26
            s_nop 0
            buffer_load_dwordx4 v3, s[80:83], s24 offen lds
            s_add_u32 s24, s24, 1024""",
        ]

    def read_parts(k):
        b = k % NB
        f = 16 + 24 * (k % 2)
        va = 4 if b < 3 else 5
        vb = 3 if b < 3 else 6
        bo = (b % 3) * 12288
        out = [f"ds_read_b128 v[{f}:{f+3}], v{va} offset:{bo}",
               f"ds_read_b128 v[{f+8}:{f+11}], v{vb} offset:{bo + 2048}",
               f"ds_read_b128 v[{f+4}:{f+7}], v{va} offset:{bo + 1024}"]
        for t in range(1, 4):
            out.append(f"ds_read_b128 v[{f+8+4*t}:{f+11+4*t}], v{vb} offset:{bo + 3072*t + 2048}")
        return out

    for k in range(5):
        for p in dma_parts(k):
            a(p)
    ACC = 128
    for i in range(128):
        a(f"v_mov_b32 v{ACC+i}, 0")
    a("""
    s_waitcnt vmcnt(12)
    s_barrier
    """)
    stamp(1)
    for p in read_parts(0):
        a(p)
    for k in range(32):
        n = 3 * max(0, min(k + 4, 31) - (k + 1))
        if k + 1 < 32:
            a(f"s_waitcnt vmcnt({n}) lgkmcnt(0)")
            a("s_barrier")
        else:
            a("s_waitcnt lgkmcnt(0)")
        if k == 16: stamp(2)
        rp = read_parts(k + 1) if k + 1 < 32 else []
        dp = dma_parts(k + 5) if k + 5 < 32 else []
        f = 16 + 24 * (k % 2)
        mf = []
        for t in range(4):
            for gu in range(2):
                acc = ACC + 64 * gu + 16 * t
                mf.append(f"v_mfma_f32_32x32x16_bf16 v[{acc}:{acc+15}], v[{f+4*gu}:{f+4*gu+3}], v[{f+8+4*t}:{f+11+4*t}], v[{acc}:{acc+15}]")
        fill = [rp[0:2], rp[2:4], rp[4:6], dp[0:1], dp[1:2], dp[2:3], [], []]
        for m, fl in zip(mf, fill):
            a(m)
            for x in fl:
                a(x)
    stamp(3)
    K0 = hx(f2u(-2.0 * 0.7978845608028654 * L2E))
    K1c = hx(f2u(-2.0 * 0.7978845608028654 * 0.044715 * L2E))
    a(f"""
    v_mov_b32 v60, {K0}
    v_mov_b32 v62, {K1c}
    v_mov_b32 v64, 1.0
    s_mul_i32 s28, s20, {112*1024}
    s_lshl_b32 s29, s19, 11
    s_add_u32 s28, s28, s29
    s_add_u32 s28, s28, {HF}
    s_nop 7
    """)
    for t in range(4):
        for half in range(2):
            o = 16 + 4 * ((2 * t + half) % 4)
            blocks = []
            for i in range(4):
                g0 = ACC + 16 * t + 8 * half + 2 * i
                u0 = g0 + 64
                tb = 66 + 8 * i
                A, B, C, D = tb, tb + 2, tb + 4, tb + 6
                blocks.append([
                    f"v_cvt_pk_bf16_f32 v{C}, v{g0}, v{g0+1}",
                    f"v_cvt_pk_bf16_f32 v{D}, v{u0}, v{u0+1}",
                    f"v_lshlrev_b32 v{A}, 16, v{C}",
                    f"v_and_b32 v{A+1}, 0xffff0000, v{C}",
                    f"v_pk_mul_f32 v[{B}:{B+1}], v[{A}:{A+1}], v[{A}:{A+1}]",
                    f"v_pk_fma_f32 v[{B}:{B+1}], v[{B}:{B+1}], v[62:63], v[60:61] op_sel_hi:[1,0,0]",
                    f"v_pk_mul_f32 v[{B}:{B+1}], v[{B}:{B+1}], v[{A}:{A+1}]",
                    f"v_exp_f32 v{B}, v{B}",
                    f"v_exp_f32 v{B+1}, v{B+1}",
                    f"v_lshlrev_b32 v{C}, 16, v{D}",
                    f"v_and_b32 v{C+1}, 0xffff0000, v{D}",
                    f"v_pk_add_f32 v[{B}:{B+1}], v[{B}:{B+1}], v[64:65] op_sel_hi:[1,0]",
                    f"v_rcp_f32 v{B}, v{B}",
                    f"v_rcp_f32 v{B+1}, v{B+1}",
                    f"v_pk_mul_f32 v[{B}:{B+1}], v[{B}:{B+1}], v[{A}:{A+1}]",
                    f"v_cvt_pk_bf16_f32 v{B}, v{B}, v{B+1}",
                    f"v_lshlrev_b32 v{A}, 16, v{B}",
                    f"v_and_b32 v{A+1}, 0xffff0000, v{B}",
                    f"v_pk_mul_f32 v[{A}:{A+1}], v[{A}:{A+1}], v[{C}:{C+1}]",
                    f"v_cvt_pk_bf16_f32 v{o+i}, v{A}, v{A+1}",
                ])
            for j in range(len(blocks[0])):
                for bl in blocks:
                    a(bl[j])
            a(f"buffer_store_dwordx4 v[{o}:{o+3}], v3, s[80:83], s28 offen offset:{1024*half}")
        a(f"s_add_u32 s28, s28, {112*1024}")
    stamp_flush(1)
    a.label("k2_end")
    a("s_endpgm")


K3_TOTAL = 256
K3_LDS = 131072


def gen_k3():
    a.raw(".text")
    a.raw(".globl k3_kernel")
    a.raw(".p2align 8")
    a.raw(".type k3_kernel,@function")
    a.label("k3_kernel")
    NW = 8
    KS = 112 // NW
    a(f"""
    s_cmp_ge_u32 s2, {K3_TOTAL}
    s_cbranch_scc1 k3_end
    s_load_dwordx2 s[14:15], s[0:1], 104
    s_load_dwordx2 s[4:5], s[0:1], 0
    s_load_dwordx2 s[6:7], s[0:1], 48
    s_load_dwordx2 s[8:9], s[0:1], 88
    v_lshrrev_b32 v1, 6, v0
    v_and_b32 v2, 63, v0
    v_readfirstlane_b32 s3, v1
    v_lshlrev_b32 v3, 4, v2
    s_lshr_b32 s18, s2, 3
    s_and_b32 s16, s18, 7
    s_lshr_b32 s18, s18, 3
    s_and_b32 s17, s2, 7
    s_lshl_b32 s17, s17, 2
    s_add_u32 s17, s17, s18
    s_waitcnt lgkmcnt(0)
    """)
    ws_srd(80)
    a(f"""
    s_mul_i32 s18, s3, {KS*1024}
    s_mul_i32 s20, s16, {2*112*1024}
    s_add_u32 s20, s20, s18
    s_add_u32 s20, s20, {WDF}
    s_add_u32 s21, s20, {112*1024}
    s_mul_i32 s22, s17, {2*112*1024}
    s_add_u32 s22, s22, s18
    s_add_u32 s22, s22, {HF}
    s_add_u32 s23, s22, {112*1024}
    """)
    SREG[0] = 90
    stamp(0)
    PD = 6
    FB = 96

    def ld(ks):
        f = FB + 16 * (ks % PD)
        o = 1024 * (ks % 4)
        a(f"""
        buffer_load_dwordx4 v[{f}:{f+3}], v3, s[80:83], s20 offen offset:{o}
        buffer_load_dwordx4 v[{f+8}:{f+11}], v3, s[80:83], s22 offen offset:{o}
        buffer_load_dwordx4 v[{f+4}:{f+7}], v3, s[80:83], s21 offen offset:{o}
        buffer_load_dwordx4 v[{f+12}:{f+15}], v3, s[80:83], s23 offen offset:{o}
        """)
        if ks % 4 == 3:
            a(f"""
            s_add_u32 s20, s20, 4096
            s_add_u32 s21, s21, 4096
            s_add_u32 s22, s22, 4096
            s_add_u32 s23, s23, 4096
            """)

    for ks in range(PD):
        ld(ks)
    a(f"""
    s_mov_b32 s84, s4
    s_and_b32 s85, s5, 0xffff
    s_mov_b32 s86, 0x200000
    s_mov_b32 s87, 0x00020000
    s_mov_b32 s88, s6
    s_and_b32 s89, s7, 0xffff
    s_mov_b32 s90, 1024
    s_mov_b32 s91, 0x00020000
    s_mov_b32 s92, s8
    s_and_b32 s93, s9, 0xffff
    s_mov_b32 s94, 0x200000
    s_mov_b32 s95, 0x00020000
    """)
    a(f"""
    s_lshr_b32 s24, s3, 2
    s_lshr_b32 s25, s3, 1
    s_and_b32 s25, s25, 1
    s_and_b32 s35, s3, 1
    s_lshl_b32 s26, s16, 1
    s_add_u32 s26, s26, s24
    s_lshl_b32 s27, s17, 1
    s_add_u32 s27, s27, s25
    v_and_b32 v4, 31, v2
    v_lshrrev_b32 v5, 5, v2
    v_lshlrev_b32 v6, 10, v4
    v_lshl_add_u32 v6, v5, 3, v6
    s_lshl_b32 s28, s27, 15
    s_lshl_b32 s29, s26, 6
    s_lshl_b32 s36, s35, 5
    s_add_u32 s29, s29, s36
    s_add_u32 s28, s28, s29
    v_lshlrev_b32 v7, 4, v4
    v_lshl_add_u32 v7, v5, 3, v7
    s_lshl_b32 s30, s27, 15
    s_lshl_b32 s31, s26, 11
    s_add_u32 s30, s30, s31
    s_lshl_b32 s36, s35, 10
    s_add_u32 s30, s30, s36
    s_add_u32 s30, s30, {XNF}
    v_lshlrev_b32 v8, 3, v5
    v_lshlrev_b32 v9, 14, v5
    v_lshl_add_u32 v9, v4, 1, v9
    s_lshl_b32 s32, s26, 17
    s_lshl_b32 s33, s27, 6
    s_add_u32 s32, s32, s33
    s_lshl_b32 s36, s35, 16
    s_add_u32 s32, s32, s36
    s_add_u32 s32, s32, {YT}
    """)
    for g in range(2):
        a(f"buffer_load_dwordx2 v[{10+2*g}:{11+2*g}], v6, s[84:87], s28 offen offset:{16*g}")
        a(f"buffer_load_dwordx2 v[{18+2*g}:{19+2*g}], v7, s[80:83], s30 offen offset:{g*512}")
        a(f"buffer_load_dwordx2 v[{26+2*g}:{27+2*g}], v8, s[88:91], s29 offen offset:{16*g}")
    for g in range(2):
        for r in range(4):
            if r == 0:
                a(f"s_add_u32 s33, s32, {8*g*4096}")
            else:
                a(f"s_add_u32 s33, s33, 4096")
            a(f"buffer_load_ushort v{34+4*g+r}, v9, s[80:83], s33 offen")
    NEP = 14
    ACC = 192
    for i in range(64):
        a(f"v_mov_b32 v{ACC+i}, 0")
    for ks in range(KS):
        later_sets = min(ks + PD - 1, KS - 1) - ks
        n = 4 * later_sets + (NEP if ks < PD else 0)
        a(f"s_waitcnt vmcnt({min(n,63)})")
        if ks == 0: stamp(1)
        if ks == KS // 2: stamp(2)
        f = FB + 16 * (ks % PD)
        for ta in range(2):
            for tb in range(2):
                acc = ACC + 16 * (2 * ta + tb)
                a(f"v_mfma_f32_32x32x16_bf16 v[{acc}:{acc+15}], v[{f+4*ta}:{f+4*ta+3}], v[{f+8+4*tb}:{f+11+4*tb}], v[{acc}:{acc+15}]")
        if ks + PD < KS:
            ld(ks + PD)
    stamp(3)
    a(f"""
    s_lshl_b32 s34, s3, 14
    v_add_u32 v50, s34, v3
    s_lshl_b32 s34, s3, 11
    v_add_u32 v51, s34, v3
    v_add_u32 v49, 65536, v51
    s_nop 7
    """)
    for t in range(4):
        for g in range(4):
            a(f"ds_write_b128 v50, v[{ACC+16*t+4*g}:{ACC+16*t+4*g+3}] offset:{4096*t + 1024*g}")
    a(f"""
    s_waitcnt lgkmcnt(0)
    s_barrier
    """)
    stamp(4)
    for w in range(8):
        for g in range(2):
            a(f"ds_read_b128 v[{96+8*w+4*g}:{96+8*w+4*g+3}], v{51 if w < 4 else 49} offset:{16384*(w%4) + 1024*g}")
    a(f"""
    s_mov_b32 s34, {hx(L2E_HI | 0x80000000)}
    s_waitcnt lgkmcnt(0)
    """)
    for i in range(8):
        a(f"""
        v_add_f32 v{96+i}, v{96+i}, v{104+i}
        v_add_f32 v{112+i}, v{112+i}, v{120+i}
        v_add_f32 v{128+i}, v{128+i}, v{136+i}
        v_add_f32 v{144+i}, v{144+i}, v{152+i}
        """)
    for i in range(8):
        a(f"""
        v_add_f32 v{96+i}, v{96+i}, v{112+i}
        v_add_f32 v{128+i}, v{128+i}, v{144+i}
        """)
    for i in range(8):
        a(f"v_add_f32 v{96+i}, v{96+i}, v{128+i}")
    a("s_waitcnt vmcnt(0)")
    for g in range(2):
        for p in range(2):
            c0 = 96 + 4 * g + 2 * p
            xr = 10 + 2 * g + p
            nr = 18 + 2 * g + p
            dr = 26 + 2 * g + p
            y0 = 34 + 4 * g + 2 * p
            a(f"""
            v_cvt_pk_bf16_f32 v52, v{c0}, v{c0+1}
            v_lshlrev_b32 v53, 16, v52
            v_and_b32 v54, 0xffff0000, v52
            v_mul_f32 v55, s34, v53
            v_mul_f32 v56, s34, v54
            v_exp_f32 v55, v55
            v_exp_f32 v56, v56
            v_lshlrev_b32 v57, 16, v{nr}
            v_and_b32 v58, 0xffff0000, v{nr}
            v_lshlrev_b32 v59, 16, v{dr}
            v_and_b32 v60, 0xffff0000, v{dr}
            v_add_f32 v55, 1.0, v55
            v_add_f32 v56, 1.0, v56
            v_rcp_f32 v55, v55
            v_rcp_f32 v56, v56
            v_mul_f32 v57, v57, v59
            v_mul_f32 v58, v58, v60
            v_mul_f32 v55, v55, v53
            v_mul_f32 v56, v56, v54
            v_cvt_pk_bf16_f32 v57, v57, v58
            v_cvt_pk_bf16_f32 v55, v55, v56
            v_lshlrev_b32 v59, 16, v{y0}
            v_lshlrev_b32 v60, 16, v{y0+1}
            v_and_b32 v58, 0xffff0000, v57
            v_lshlrev_b32 v57, 16, v57
            v_add_f32 v57, v57, v59
            v_add_f32 v58, v58, v60
            v_cvt_pk_bf16_f32 v57, v57, v58
            v_and_b32 v56, 0xffff0000, v55
            v_lshlrev_b32 v55, 16, v55
            v_and_b32 v58, 0xffff0000, v57
            v_lshlrev_b32 v57, 16, v57
            v_mul_f32 v57, v57, v55
            v_mul_f32 v58, v58, v56
            v_cvt_pk_bf16_f32 v57, v57, v58
            v_lshlrev_b32 v59, 16, v{xr}
            v_and_b32 v60, 0xffff0000, v{xr}
            v_and_b32 v58, 0xffff0000, v57
            v_lshlrev_b32 v57, 16, v57
            v_add_f32 v57, v57, v59
            v_add_f32 v58, v58, v60
            v_cvt_pk_bf16_f32 v{64+2*g+p}, v57, v58
            """)
        a(f"buffer_store_dwordx2 v[{64+2*g}:{65+2*g}], v6, s[92:95], s28 offen offset:{16*g}")
    stamp_flush(2)
    a.label("k3_end")
    a("s_endpgm")


def descriptor(name, vgpr):
    a.raw(f""".amdhsa_kernel {name}
  .amdhsa_next_free_vgpr {vgpr}
  .amdhsa_next_free_sgpr 102
  .amdhsa_accum_offset {((vgpr+3)//4)*4}
  .amdhsa_group_segment_fixed_size 0
  .amdhsa_kernarg_size 112
  .amdhsa_user_sgpr_count 2
  .amdhsa_user_sgpr_kernarg_segment_ptr 1
  .amdhsa_system_sgpr_workgroup_id_x 1
.end_amdhsa_kernel""")


def main():
    hdr = open(f"cdna_kernels/{NAME}.s.ref").read().split("\n")
    keep = []
    for ln in hdr:
        if not ln.startswith(";"):
            break
        if "@launch" in ln or "Override launch" in ln or "grid=ceil" in ln:
            continue
        keep.append(ln)
    out = "\n".join(keep) + "\n"
    out += f"; @launch kernel=k1_kernel grid=({K1_TOTAL},1,1) block=(256,1,1) lds=20480\n"
    out += f"; @launch kernel=k2_kernel grid=({K2_TOTAL},1,1) block=(256,1,1) lds={K2_LDS}\n"
    out += f"; @launch kernel=k3_kernel grid=({K3_TOTAL},1,1) block=(512,1,1) lds={K3_LDS}\n"
    out += '.amdgcn_target "amdgcn-amd-amdhsa--gfx950"\n'
    gen_k1()
    gen_k2()
    gen_k3()
    a.raw('.section .rodata,"a"')
    a.raw(".p2align 6")
    descriptor("k1_kernel", 128)
    a.raw(".p2align 6")
    descriptor("k2_kernel", 256)
    a.raw(".p2align 6")
    descriptor("k3_kernel", 256)
    out += a.text()
    path = sys.argv[1] if len(sys.argv) > 1 else f"cdna_kernels/{NAME}.s"
    open(path, "w").write(out)
    print("wrote", path, len(out), "bytes")


main()
```

```python
import struct, sys
import numpy as np

NAME = "recurrent_scan__ssm_conv_s4d__geglu_ffn__prompt"


def f2u(x):
    return struct.unpack("<I", struct.pack("<f", np.float32(x)))[0]


def hx(x):
    return "0x%08x" % (x & 0xFFFFFFFF)


L2E = 1.4426950408889634
L2E_HI = f2u(L2E)
L2E_LO = f2u(L2E - float(np.float32(L2E)))
I2P = 0.15915494309189535
I2P_HI = f2u(I2P)
I2P_LO = f2u(I2P - float(np.float32(I2P)))
LN2 = f2u(0.6931471805599453)

XNF = 0x0
IMG = 0x200000
IMG_STRIDE = 21504
UR_O = 4160
KF_OFF = 9216
KT = 0x200000
WGF = 0xC80000
WDF = 0x1000000
HF = 0x1200000
YT = 0x1900000
WS_SIZE = 0x1B00000


class Asm:
    def __init__(self):
        self.lines = []

    def __call__(self, s):
        for ln in s.strip("\n").split("\n"):
            ln = ln.strip()
            if ln:
                self.lines.append("    " + ln)

    def label(self, l):
        self.lines.append(l + ":")

    def raw(self, s):
        self.lines.append(s)

    def text(self):
        return "\n".join(self.lines) + "\n"


a = Asm()
import os
SKIP = os.environ.get("SKIP", "").split(",")
STAMPS = os.environ.get("STAMPS", "") != ""
STAMP_BASE = 0x1B00000
if STAMPS:
    WS_SIZE = 0x1C00000
SREG = [170]


def stamp(i):
    if not STAMPS:
        return
    a(f"""
    s_memtime s[100:101]
    s_waitcnt lgkmcnt(0)
    v_writelane_b32 v{SREG[0]}, s100, {i}
    """)
    if i == 0:
        a(f"""
        s_memrealtime s[100:101]
        s_waitcnt lgkmcnt(0)
        v_writelane_b32 v{SREG[0]}, s100, 5
        """)


def stamp_flush(kid):
    if not STAMPS:
        return
    a(f"""
    s_memtime s[100:101]
    s_waitcnt lgkmcnt(0)
    v_writelane_b32 v{SREG[0]}, s100, 7
    s_memrealtime s[100:101]
    s_waitcnt lgkmcnt(0)
    v_writelane_b32 v{SREG[0]}, s100, 6
    s_lshl_b32 s100, s2, 3
    s_add_u32 s100, s100, s3
    s_lshl_b32 s100, s100, 5
    s_add_u32 s100, s100, {STAMP_BASE + kid*0x40000}
    v_lshlrev_b32 v{SREG[0]+1}, 2, v2
    v_cmp_gt_u32 vcc, 8, v2
    s_and_saveexec_b64 s[98:99], vcc
    buffer_store_dword v{SREG[0]}, v{SREG[0]+1}, s[80:83], s100 offen
    s_mov_b64 exec, s[98:99]
    """)

K1_KG = 512
K1_LN = 64
K1_SG = 224
K1_SD = 112
K1_TOTAL = K1_KG + K1_LN + K1_SG + K1_SD


def ws_srd(dst, base_lo=14, base_hi=15):
    a(f"""
    s_mov_b32 s{dst}, s{base_lo}
    s_and_b32 s{dst+1}, s{base_hi}, 0xffff
    s_mov_b32 s{dst+2}, {hx(WS_SIZE)}
    s_mov_b32 s{dst+3}, 0x00020000
    """)


def gen_k1():
    a.raw(".text")
    a.raw(".globl k1_kernel")
    a.raw(".p2align 8")
    a.raw(".type k1_kernel,@function")
    a.label("k1_kernel")
    a(f"""
    s_cmp_ge_u32 s2, {K1_TOTAL}
    s_cbranch_scc1 k1_end
    s_load_dwordx2 s[14:15], s[0:1], 104
    v_lshrrev_b32 v1, 6, v0
    v_and_b32 v2, 63, v0
    v_readfirstlane_b32 s3, v1
    s_cmp_lt_u32 s2, {K1_LN}
    s_cbranch_scc1 k1_ln
    s_cmp_lt_u32 s2, {K1_KG + K1_LN}
    s_cbranch_scc1 k1_kgen
    s_cmp_lt_u32 s2, {K1_KG + K1_LN + K1_SG}
    s_cbranch_scc1 k1_shg
    s_branch k1_shd
    """)
    a.label("k1_kgen")
    if "kgen" in SKIP: a("s_endpgm")
    a("s_mov_b32 s97, s2")
    a(f"s_sub_u32 s2, s2, {K1_LN}")
    SREG[0] = 38
    stamp(0)
    a(f"""
    s_load_dwordx8 s[4:11], s[0:1], 8
    s_load_dwordx2 s[12:13], s[0:1], 40
    v_and_b32 v3, 31, v2
    s_lshl_b32 s84, s2, 8
    s_lshl_b32 s85, s3, 6
    s_add_u32 s84, s84, s85
    v_lshlrev_b32 v9, 1, v3
    v_add_u32 v9, s84, v9
    s_waitcnt lgkmcnt(0)
    """)
    ws_srd(80)
    for i in range(4):
        a(f"""
        s_mov_b32 s{16+4*i}, s{4+2*i}
        s_and_b32 s{17+4*i}, s{5+2*i}, 0xffff
        s_mov_b32 s{18+4*i}, 131072
        s_mov_b32 s{19+4*i}, 0x00020000
        """)
    a(f"""
    s_lshr_b32 s85, s2, 1
    s_lshl_b32 s85, s85, 2
    s_add_u32 s12, s12, s85
    s_addc_u32 s13, s13, 0
    s_load_dword s86, s[12:13], 0
    buffer_load_ushort v10, v9, s[16:19], 0 offen
    buffer_load_ushort v11, v9, s[20:23], 0 offen
    buffer_load_ushort v12, v9, s[24:27], 0 offen
    buffer_load_ushort v13, v9, s[28:31], 0 offen
    s_mov_b32 s88, {hx(L2E_HI)}
    s_mov_b32 s89, {hx(L2E_LO)}
    s_mov_b32 s90, {hx(I2P_HI)}
    s_mov_b32 s91, {hx(I2P_LO)}
    v_lshlrev_b32 v20, 1, v3
    v_add_u32 v20, 240, v20
    v_subrev_u32 v21, 12, v3
    v_lshrrev_b32 v22, 1, v21
    v_lshlrev_b32 v22, 8, v22
    v_and_b32 v21, 1, v21
    v_lshlrev_b32 v21, 2, v21
    v_add_u32 v21, v21, v22
    v_add_u32 v21, 512, v21
    v_subrev_u32 v22, 12, v3
    v_lshlrev_b32 v22, 8, v22
    v_mov_b32 v23, 0
    v_mov_b32 v5, v3
    v_cmp_le_u32 vcc, 8, v3
    s_nop 1
    v_cndmask_b32 v5, v5, v20, vcc
    v_cmp_le_u32 vcc, 12, v3
    s_nop 1
    v_cndmask_b32 v5, v5, v21, vcc
    v_cmp_le_u32 vcc, 16, v3
    s_nop 1
    v_cndmask_b32 v5, v5, v22, vcc
    v_cmp_le_u32 vcc, 21, v3
    s_nop 1
    v_cndmask_b32 v5, v5, v23, vcc
    v_cvt_f32_u32 v5, v5
    v_lshlrev_b32 v6, 3, v3
    v_cvt_f32_u32 v6, v6
    s_mul_i32 s87, s3, 640
    s_add_u32 s87, s87, 16384
    v_lshlrev_b32 v4, 2, v3
    v_add_u32 v4, s87, v4
    v_lshrrev_b32 v9, 5, v2
    v_lshlrev_b32 v9, 4, v9
    v_add_u32 v9, s87, v9
    """)
    for i in range(16):
        a(f"v_mov_b32 v{80+i}, 0")
    a(f"""
    s_waitcnt lgkmcnt(0)
    s_lshr_b32 s87, s86, 16
    s_and_b32 s86, s86, 0xffff
    s_bitcmp1_b32 s2, 0
    s_cselect_b32 s86, s87, s86
    s_lshl_b32 s86, s86, 16
    v_mov_b32 v24, s86
    v_mul_f32 v14, s88, v24
    v_fma_f32 v15, v24, s88, -v14
    v_fma_f32 v15, v24, s89, v15
    v_exp_f32 v16, v14
    v_mul_f32 v15, {hx(LN2)}, v15
    s_nop 0
    v_fma_f32 v16, v16, v15, v16
    v_cvt_pk_bf16_f32 v16, v16, v16
    v_lshlrev_b32 v7, 16, v16
    v_add_f32 v8, v7, v7
    s_waitcnt vmcnt(0)
    v_lshlrev_b32 v10, 16, v10
    v_lshlrev_b32 v11, 16, v11
    v_lshlrev_b32 v12, 16, v12
    v_lshlrev_b32 v13, 16, v13
    v_mul_f32 v14, s88, v10
    v_fma_f32 v15, v10, s88, -v14
    v_fma_f32 v15, v10, s89, v15
    v_exp_f32 v16, v14
    v_mul_f32 v15, {hx(LN2)}, v15
    v_mul_f32 v11, v11, v7
    v_fma_f32 v16, v16, v15, v16
    v_mul_f32 v18, s90, v11
    v_cvt_pk_bf16_f32 v16, v16, v16
    v_fma_f32 v19, v11, s90, -v18
    v_lshlrev_b32 v16, 16, v16
    v_fma_f32 v19, v11, s91, v19
    v_mul_f32 v16, v16, v7
    v_mul_f32 v20, v12, v8
    v_mul_f32 v21, v13, v8
    v_mul_f32 v17, {hx(L2E_HI | 0x80000000)}, v16
    ds_write_b32 v4, v18 offset:128
    ds_write_b32 v4, v19 offset:256
    ds_write_b32 v4, v20 offset:384
    ds_write_b32 v4, v21 offset:512
    ds_write_b32 v4, v17 offset:0
    s_waitcnt lgkmcnt(0)
    """)
    stamp(1)

    def kg_read(g):
        pb = 40 + 20 * (g % 2)
        for p in range(5):
            a(f"ds_read_b128 v[{pb+4*p}:{pb+4*p+3}], v9 offset:{128*p + 32*g}")

    kg_read(0)
    for g in range(4):
        if g + 1 < 4:
            kg_read(g + 1)
            a("s_waitcnt lgkmcnt(5)")
        else:
            a("s_waitcnt lgkmcnt(0)")
        pb = 40 + 20 * (g % 2)
        for pair in range(2):
            stages = [[] for _ in range(16)]
            for m in range(2):
                i = 2 * pair + m
                ard2, whi, wlo, cr2, ci2 = (pb + 4 * p + i for p in range(5))
                t = 10 + 12 * m
                rA, rlA, eA, sA, cA, t1, t2, rB, rlB, eB, sB, cB = range(t, t + 12)
                Gr, nGi, Fr, Fi = 96 + 2 * i, 97 + 2 * i, 104 + 2 * i, 105 + 2 * i
                seq = [
                    [f"v_mul_f32 v{rA}, v{whi}, v5", f"v_mul_f32 v{rB}, v{whi}, v6"],
                    [f"v_mul_f32 v{eA}, v{ard2}, v5", f"v_mul_f32 v{eB}, v{ard2}, v6"],
                    [f"v_fma_f32 v{rlA}, v{whi}, v5, -v{rA}", f"v_fma_f32 v{rlB}, v{whi}, v6, -v{rB}"],
                    [f"v_exp_f32 v{eA}, v{eA}", f"v_exp_f32 v{eB}, v{eB}"],
                    [f"v_fma_f32 v{rlA}, v{wlo}, v5, v{rlA}", f"v_fma_f32 v{rlB}, v{wlo}, v6, v{rlB}"],
                    [f"v_fract_f32 v{rA}, v{rA}", f"v_fract_f32 v{rB}, v{rB}"],
                    [f"v_add_f32 v{rA}, v{rA}, v{rlA}", f"v_add_f32 v{rB}, v{rB}, v{rlB}"],
                    [f"v_sin_f32 v{sA}, v{rA}", f"v_cos_f32 v{cA}, v{rA}"],
                    [f"v_sin_f32 v{sB}, v{rB}", f"v_cos_f32 v{cB}, v{rB}"],
                    [f"v_mul_f32 v{t1}, v{ci2}, v{sA}", f"v_mul_f32 v{t2}, v{ci2}, v{cA}"],
                    [f"v_fma_f32 v{t1}, v{cr2}, v{cA}, -v{t1}", f"v_fma_f32 v{t2}, v{cr2}, v{sA}, v{t2}"],
                    [f"v_mul_f32 v{Fr}, v{eB}, v{cB}", f"v_mul_f32 v{Fi}, v{eB}, v{sB}"],
                    [f"v_mul_f32 v{Gr}, v{eA}, v{t1}", f"v_mul_f32_e64 v{nGi}, -v{eA}, v{t2}"],
                    [f"v_cvt_pk_bf16_f32 v{120+i}, v{Fr}, v{Fi}", f"v_cvt_pk_bf16_f32 v{112+i}, v{Gr}, v{nGi}"],
                    [f"v_lshlrev_b32 v{rA}, 16, v{120+i}", f"v_and_b32 v{rlA}, 0xffff0000, v{120+i}",
                     f"v_lshlrev_b32 v{rB}, 16, v{112+i}", f"v_and_b32 v{rlB}, 0xffff0000, v{112+i}"],
                    [f"v_sub_f32 v{Fr}, v{Fr}, v{rA}", f"v_sub_f32 v{Fi}, v{Fi}, v{rlA}",
                     f"v_sub_f32 v{Gr}, v{Gr}, v{rB}", f"v_sub_f32 v{nGi}, v{nGi}, v{rlB}",
                     f"v_cvt_pk_bf16_f32 v{124+i}, v{Fr}, v{Fi}", f"v_cvt_pk_bf16_f32 v{116+i}, v{Gr}, v{nGi}"],
                ]
                for k, st in enumerate(seq):
                    stages[k] += st
            for st in stages:
                for ins in st:
                    a(ins)
        a(f"""
        s_nop 1
        v_mfma_f32_32x32x16_bf16 v[80:95], v[112:115], v[120:123], v[80:95]
        v_mfma_f32_32x32x16_bf16 v[80:95], v[112:115], v[124:127], v[80:95]
        v_mfma_f32_32x32x16_bf16 v[80:95], v[116:119], v[120:123], v[80:95]
        """)
    stamp(2)
    a(f"""
    s_lshl_b32 s84, s3, 12
    v_lshlrev_b32 v10, 4, v2
    v_add_u32 v11, s84, v10
    s_lshl_b32 s84, s3, 10
    v_add_u32 v12, s84, v10
    s_lshl_b32 s85, s2, 12
    s_add_u32 s85, s85, s84
    s_add_u32 s85, s85, {KT}
    s_nop 10
    """)
    for g in range(3):
        a(f"ds_write_b128 v11, v[{80+4*g}:{83+4*g}] offset:{1024*g}")
    a(f"""
    s_waitcnt lgkmcnt(0)
    s_barrier
    s_cmp_eq_u32 s3, 3
    s_cbranch_scc1 k1_end
    """)
    stamp(3)
    for w in range(4):
        a(f"ds_read_b128 v[{40+4*w}:{43+4*w}], v12 offset:{4096*w}")
    a("s_waitcnt lgkmcnt(0)")
    for r in range(4):
        a(f"""
        v_add_f32 v{40+r}, v{40+r}, v{44+r}
        v_add_f32 v{48+r}, v{48+r}, v{52+r}
        """)
    for r in range(4):
        a(f"v_add_f32 v{40+r}, v{40+r}, v{48+r}")
    a("buffer_store_dwordx4 v[40:43], v10, s[80:83], s85 offen")
    a("s_mov_b32 s2, s97")
    stamp_flush(0)
    a("s_endpgm")

    a.label("k1_ln")
    if "ln" in SKIP: a("s_endpgm")
    SREG[0] = 126
    stamp(0)
    a(f"""
    s_load_dwordx2 s[4:5], s[0:1], 0
    s_setprio 3
    s_mov_b32 s16, s2
    s_lshl_b32 s16, s16, 2
    s_add_u32 s16, s16, s3
    s_lshl_b32 s17, s16, 3
    s_lshl_b32 s18, s17, 10
    v_lshlrev_b32 v3, 4, v2
    s_waitcnt lgkmcnt(0)
    """)
    ws_srd(80)
    a(f"""
    s_mov_b32 s84, s4
    s_and_b32 s85, s5, 0xffff
    s_mov_b32 s86, 0x200000
    s_mov_b32 s87, 0x00020000
    """)
    for r in range(8):
        if r == 4:
            a("s_add_u32 s18, s18, 4096")
        a(f"buffer_load_dwordx4 v[{8+4*r}:{11+4*r}], v3, s[84:87], s18 offen offset:{(r%4)*1024}")

    def val(r, k):
        return 40 + 8 * r + k

    SUM = 104
    for r in range(8):
        a(f"s_waitcnt vmcnt({7-r})")
        for i in range(4):
            a(f"""
            v_lshlrev_b32 v{val(r,2*i)}, 16, v{8+4*r+i}
            v_and_b32 v{val(r,2*i+1)}, 0xffff0000, v{8+4*r+i}
            """)
        a(f"""
        v_pk_add_f32 v[4:5], v[{val(r,0)}:{val(r,1)}], v[{val(r,2)}:{val(r,3)}]
        v_pk_add_f32 v[6:7], v[{val(r,4)}:{val(r,5)}], v[{val(r,6)}:{val(r,7)}]
        v_pk_add_f32 v[4:5], v[4:5], v[6:7]
        v_add_f32 v{SUM+r}, v4, v5
        """)

    def dpp_reduce(base):
        for mod in ["row_shr:1 row_mask:0xf bank_mask:0xf bound_ctrl:0",
                    "row_shr:2 row_mask:0xf bank_mask:0xf bound_ctrl:0",
                    "row_shr:4 row_mask:0xf bank_mask:0xf bound_ctrl:0",
                    "row_shr:8 row_mask:0xf bank_mask:0xf bound_ctrl:0",
                    "row_bcast:15 row_mask:0xa bank_mask:0xf",
                    "row_bcast:31 row_mask:0xc bank_mask:0xf"]:
            for r in range(8):
                a(f"v_add_f32_dpp v{base+r}, v{base+r}, v{base+r} {mod}")

    stamp(1)
    a("s_nop 1")
    dpp_reduce(SUM)
    a("s_nop 1")
    for r in range(8):
        a(f"v_readlane_b32 s{20+r}, v{SUM+r}, 63")
    a("s_nop 1")
    inv512 = hx(f2u(1.0 / 512))
    for r in range(8):
        a(f"""
        v_mov_b32 v{8+4*r}, s{20+r}
        v_mul_f32 v{8+4*r}, {inv512}, v{8+4*r}
        """)
    for r in range(8):
        mu = 8 + 4 * r
        a(f"""
        v_pk_add_f32 v[4:5], v[{val(r,0)}:{val(r,1)}], v[{mu}:{mu+1}] op_sel_hi:[1,0] neg_lo:[0,1] neg_hi:[0,1]
        v_pk_add_f32 v[6:7], v[{val(r,2)}:{val(r,3)}], v[{mu}:{mu+1}] op_sel_hi:[1,0] neg_lo:[0,1] neg_hi:[0,1]
        v_pk_mul_f32 v[112:113], v[4:5], v[4:5]
        v_pk_mul_f32 v[114:115], v[6:7], v[6:7]
        v_pk_add_f32 v[4:5], v[{val(r,4)}:{val(r,5)}], v[{mu}:{mu+1}] op_sel_hi:[1,0] neg_lo:[0,1] neg_hi:[0,1]
        v_pk_add_f32 v[6:7], v[{val(r,6)}:{val(r,7)}], v[{mu}:{mu+1}] op_sel_hi:[1,0] neg_lo:[0,1] neg_hi:[0,1]
        v_pk_fma_f32 v[112:113], v[4:5], v[4:5], v[112:113]
        v_pk_fma_f32 v[114:115], v[6:7], v[6:7], v[114:115]
        v_pk_add_f32 v[112:113], v[112:113], v[114:115]
        v_add_f32 v{SUM+r}, v112, v113
        """)
    a("s_nop 1")
    dpp_reduce(SUM)
    a("s_nop 1")
    for r in range(8):
        a(f"v_readlane_b32 s{32+r}, v{SUM+r}, 63")
    a("s_nop 1")
    eps = hx(f2u(1e-5))
    RCP = [112, 114, 116, 118, 120, 122, 124, 6]
    for r in range(8):
        a(f"""
        v_mov_b32 v4, s{32+r}
        v_mul_f32 v4, {inv512}, v4
        v_cvt_pk_bf16_f32 v4, v4, v{8+4*r}
        v_and_b32 v{8+4*r}, 0xffff0000, v4
        v_lshlrev_b32 v4, 16, v4
        v_add_f32 v4, {eps}, v4
        v_cvt_pk_bf16_f32 v4, v4, v4
        v_lshlrev_b32 v4, 16, v4
        v_sqrt_f32 v4, v4
        s_nop 0
        v_cvt_pk_bf16_f32 v4, v4, v4
        v_lshlrev_b32 v{10+4*r}, 16, v4
        v_rcp_f32 v{RCP[r]}, v{10+4*r}
        """)
    stamp(2)
    a(f"""
    v_lshrrev_b32 v3, 1, v2
    v_lshlrev_b32 v3, 10, v3
    v_and_b32 v4, 1, v2
    v_lshl_add_u32 v3, v4, 9, v3
    s_lshr_b32 s19, s17, 5
    s_lshl_b32 s19, s19, 15
    s_and_b32 s18, s17, 31
    s_lshl_b32 s18, s18, 4
    s_add_u32 s18, s18, s19
    """)
    for r in range(8):
        mb, den, rc = 8 + 4 * r, 10 + 4 * r, RCP[r]
        o = 104 + 4 * (r % 2)
        for k in range(0, 8, 2):
            x0 = val(r, k)
            a(f"""
            v_pk_add_f32 v[4:5], v[{x0}:{x0+1}], v[{mb}:{mb+1}] op_sel_hi:[1,0] neg_lo:[0,1] neg_hi:[0,1]
            v_cvt_pk_bf16_f32 v4, v4, v5
            v_and_b32 v5, 0xffff0000, v4
            v_lshlrev_b32 v4, 16, v4
            v_pk_mul_f32 v[{x0}:{x0+1}], v[4:5], v[{rc}:{rc+1}] op_sel_hi:[1,0]
            v_pk_fma_f32 v[4:5], v[{x0}:{x0+1}], v[{den}:{den+1}], v[4:5] op_sel_hi:[1,0,1] neg_lo:[1,0,0] neg_hi:[1,0,0]
            v_pk_fma_f32 v[{x0}:{x0+1}], v[4:5], v[{rc}:{rc+1}], v[{x0}:{x0+1}] op_sel_hi:[1,0,1]
            v_cvt_pk_bf16_f32 v{o+k//2}, v{x0}, v{x0+1}
            """)
        a(f"buffer_store_dwordx4 v[{o}:{o+3}], v3, s[80:83], s18 offen offset:{16*r}")
    stamp_flush(0)
    a("s_endpgm")

    a.label("k1_shg")
    if "shg" in SKIP: a("s_endpgm")
    stamp(0)
    a(f"""
    s_load_dwordx4 s[4:7], s[0:1], 64
    s_sub_u32 s16, s2, {K1_KG + K1_LN}
    s_lshl_b32 s16, s16, 2
    s_add_u32 s16, s16, s3
    s_lshr_b32 s17, s16, 4
    s_lshr_b32 s18, s16, 3
    s_and_b32 s18, s18, 1
    s_and_b32 s19, s16, 7
    s_waitcnt lgkmcnt(0)
    """)
    ws_srd(80)
    a(f"""
    s_cmp_eq_u32 s18, 0
    s_cselect_b32 s84, s4, s6
    s_cselect_b32 s85, s5, s7
    s_and_b32 s85, s85, 0xffff
    s_mov_b32 s86, {512*1792*2}
    s_mov_b32 s87, 0x00020000
    v_lshrrev_b32 v3, 5, v2
    v_mul_u32_u24 v3, {8*3584}, v3
    v_and_b32 v4, 31, v2
    v_lshl_add_u32 v3, v4, 1, v3
    s_lshl_b32 s20, s17, 6
    v_add_u32 v3, s20, v3
    s_mul_i32 s20, s19, {64*3584}
    """)
    for fr in range(4):
        for e in range(8):
            a(f"""
            buffer_load_ushort v{10+8*fr+e}, v3, s[84:87], s20 offen
            s_add_u32 s20, s20, 3584
            """)
        a(f"s_add_u32 s20, s20, {8*3584}")
    a(f"""
    s_lshl_b32 s20, s17, 1
    s_add_u32 s20, s20, s18
    s_lshl_b32 s20, s20, 15
    s_lshl_b32 s21, s19, 12
    s_add_u32 s20, s20, s21
    s_add_u32 s20, s20, {WGF}
    v_lshlrev_b32 v4, 4, v2
    """)
    for fr in range(4):
        a(f"s_waitcnt vmcnt({24-8*fr})")
        for i in range(4):
            a(f"v_lshl_or_b32 v{50+4*fr+i}, v{10+8*fr+2*i+1}, 16, v{10+8*fr+2*i}")
        a(f"buffer_store_dwordx4 v[{50+4*fr}:{53+4*fr}], v4, s[80:83], s20 offen offset:{1024*fr}")
    stamp_flush(0)
    a("s_endpgm")

    a.label("k1_shd")
    if "shd" in SKIP: a("s_endpgm")
    stamp(0)
    a(f"""
    s_load_dwordx2 s[4:5], s[0:1], 80
    s_sub_u32 s16, s2, {K1_KG + K1_LN + K1_SG}
    s_lshl_b32 s16, s16, 2
    s_add_u32 s16, s16, s3
    s_lshr_b32 s17, s16, 4
    s_and_b32 s18, s16, 15
    s_waitcnt lgkmcnt(0)
    """)
    ws_srd(80)
    a(f"""
    s_mov_b32 s84, s4
    s_and_b32 s85, s5, 0xffff
    s_mov_b32 s86, {512*1792*2}
    s_mov_b32 s87, 0x00020000
    v_lshrrev_b32 v3, 5, v2
    v_lshlrev_b32 v3, 12, v3
    v_and_b32 v4, 31, v2
    v_lshl_add_u32 v3, v4, 1, v3
    s_lshl_b32 s20, s18, 6
    v_add_u32 v3, s20, v3
    s_lshl_b32 s20, s17, 16
    """)
    for fr in range(4):
        for e in range(8):
            f = 16 * fr + 8 * (e >> 2) + (e & 3)
            a(f"""
            s_add_u32 s21, s20, {f*1024}
            buffer_load_ushort v{10+8*fr+e}, v3, s[84:87], s21 offen
            """)
    a(f"""
    s_mul_i32 s20, s18, {112*1024}
    s_lshl_b32 s21, s17, 12
    s_add_u32 s20, s20, s21
    s_add_u32 s20, s20, {WDF}
    v_lshlrev_b32 v4, 4, v2
    """)
    for fr in range(4):
        a(f"s_waitcnt vmcnt({24-8*fr})")
        for i in range(4):
            a(f"v_lshl_or_b32 v{50+4*fr+i}, v{10+8*fr+2*i+1}, 16, v{10+8*fr+2*i}")
        a(f"buffer_store_dwordx4 v[{50+4*fr}:{53+4*fr}], v4, s[80:83], s20 offen offset:{1024*fr}")
    stamp_flush(0)
    a.label("k1_end")
    a("s_endpgm")


K2_CV = 256
K2_G1 = 224
K2_TOTAL = K2_CV + K2_G1
K2_LDS = 73728


def gen_k2():
    a.raw(".text")
    a.raw(".globl k2_kernel")
    a.raw(".p2align 8")
    a.raw(".type k2_kernel,@function")
    a.label("k2_kernel")
    a(f"""
    s_cmp_ge_u32 s2, {K2_TOTAL}
    s_cbranch_scc1 k2_end
    s_load_dwordx2 s[14:15], s[0:1], 104
    v_lshrrev_b32 v1, 6, v0
    v_and_b32 v2, 63, v0
    v_readfirstlane_b32 s3, v1
    v_lshlrev_b32 v3, 4, v2
    s_waitcnt lgkmcnt(0)
    """)
    ws_srd(80)
    a(f"""
    s_cmp_ge_u32 s2, {K2_CV}
    s_cbranch_scc1 k2_gemm
    """)
    if "conv" in SKIP: a("s_endpgm")
    SREG[0] = 230
    stamp(0)
    RED = 2 * IMG_STRIDE
    a(f"""
    s_lshr_b32 s16, s3, 1
    s_and_b32 s17, s3, 1
    s_lshl_b32 s18, s2, 1
    s_add_u32 s18, s18, s16
    s_mul_i32 s20, s16, {IMG_STRIDE}
    """)
    a(f"""
    s_lshl_b32 s21, s18, 12
    s_lshl_b32 s22, s17, 11
    s_add_u32 s21, s21, s22
    s_add_u32 s21, s21, {KT}
    buffer_load_dwordx4 v[40:43], v3, s[80:83], s21 offen
    buffer_load_dwordx4 v[44:47], v3, s[80:83], s21 offen offset:1024
    """)
    a(f"""
    v_lshrrev_b32 v4, 5, v2
    v_lshlrev_b32 v4, 15, v4
    v_and_b32 v34, 31, v2
    v_lshl_add_u32 v4, v34, 4, v4
    s_lshr_b32 s22, s2, 2
    s_lshl_b32 s22, s22, 9
    s_and_b32 s23, s2, 3
    s_lshl_b32 s23, s23, 2
    s_add_u32 s22, s22, s23
    s_lshl_b32 s23, s3, 19
    s_add_u32 s22, s22, s23
    """)
    for i in range(8):
        a(f"buffer_load_dword v{128+i}, v4, s[80:83], s22 offen")
        if i < 7:
            a("s_add_u32 s22, s22, 65536")
    a(f"""
    v_lshrrev_b32 v24, 5, v2
    v_mul_u32_u24 v24, {96*16}, v24
    v_lshl_add_u32 v24, v34, 4, v24
    s_mul_i32 s84, s17, {4*96*16}
    s_add_u32 s84, s84, s20
    s_add_u32 s84, s84, {KF_OFF}
    v_add_u32 v24, s84, v24
    v_mov_b32 v28, 0
    v_mov_b32 v29, 0
    v_mov_b32 v30, 0
    v_mov_b32 v31, 0
    ds_write_b128 v24, v[28:31]
    ds_write_b128 v24, v[28:31] offset:{2*96*16}
    v_lshlrev_b32 v25, 1, v2
    v_add_u32 v25, {2*2048}, v25
    s_cmp_lg_u32 s3, 0
    s_cbranch_scc1 k2_cv_nozero
    v_cmp_gt_u32 vcc, 32, v2
    s_and_saveexec_b64 s[24:25], vcc
    ds_write_b16 v25, v28 offset:{UR_O}
    ds_write_b16 v25, v28 offset:{UR_O + IMG_STRIDE}
    v_cmp_gt_u32 vcc, 31, v2
    s_and_b64 exec, exec, vcc
    ds_write_b16 v25, v28 offset:2
    ds_write_b16 v25, v28 offset:{2 + IMG_STRIDE}
    s_mov_b64 exec, s[24:25]
    """)
    a.label("k2_cv_nozero")
    a(f"""
    s_lshl_b32 s84, s17, 4
    v_lshlrev_b32 v26, 5, v2
    v_add_u32 v26, s84, v26
    s_lshl_b32 s84, s16, 12
    s_add_u32 s84, s84, {RED}
    """)
    for e in range(16):
        a(f"""
        v_add_u32 v20, {e}, v26
        v_cvt_f32_u32 v20, v20
        v_cvt_pk_bf16_f32 v20, v20, v20
        v_lshlrev_b32 v20, 16, v20
        v_cvt_u32_f32 v20, v20
        v_lshrrev_b32 v21, 8, v20
        v_and_b32 v22, 7, v20
        v_lshrrev_b32 v23, 1, v20
        v_and_b32 v23, 0x7c, v23
        v_lshrrev_b32 v24, 1, v22
        v_add_u32 v24, 8, v24
        v_lshrrev_b32 v25, 2, v22
        v_lshl_add_u32 v25, v21, 1, v25
        v_add_u32 v25, 8, v25
        v_add_u32 v27, 12, v21
        v_cmp_le_u32 vcc, 1, v21
        v_add_u32 v23, s84, v23
        s_nop 0
        v_cndmask_b32 v22, v22, v24, vcc
        v_cmp_le_u32 vcc, 2, v21
        s_nop 1
        v_cndmask_b32 v22, v22, v25, vcc
        v_cmp_le_u32 vcc, 4, v21
        s_nop 1
        v_cndmask_b32 v22, v22, v27, vcc
        v_lshl_add_u32 v{136+e}, v22, 7, v23
        """)
    a(f"""
    v_lshrrev_b32 v20, 5, v2
    v_lshlrev_b32 v20, 3, v20
    v_sub_u32 v20, v20, v34
    v_lshlrev_b32 v20, 1, v20
    v_and_b32 v21, 1, v34
    v_mul_u32_u24 v21, {UR_O - 2}, v21
    v_add_u32 v20, v20, v21
    s_lshl_b32 s21, s17, 5
    s_add_u32 s21, s21, s20
    s_add_u32 s21, s21, {2*(2048 - 16*126)}
    v_add_u32 v152, s21, v20
    v_add_u32 v153, 1024, v152
    v_add_u32 v154, 2048, v152
    v_add_u32 v155, 3072, v152
    v_lshrrev_b32 v20, 5, v2
    v_mul_u32_u24 v20, {96*16}, v20
    v_lshl_add_u32 v20, v34, 4, v20
    s_mul_i32 s21, s17, {2*96*16}
    s_add_u32 s21, s21, s20
    s_add_u32 s21, s21, {KF_OFF - 31*16}
    v_add_u32 v156, s21, v20
    s_lshl_b32 s23, s3, 10
    s_sub_u32 s23, {4096 - 2*448}, s23
    v_lshlrev_b32 v157, 1, v2
    v_sub_u32 v157, s23, v157
    v_lshrrev_b32 v158, 5, v2
    v_lshlrev_b32 v158, 9, v158
    v_lshl_add_u32 v158, v34, 2, v158
    s_lshl_b32 s84, s3, 11
    s_add_u32 s84, s84, {RED}
    v_add_u32 v158, s84, v158
    s_mul_i32 s84, s17, {2*96*16}
    s_add_u32 s84, s84, s20
    s_add_u32 s84, s84, {KF_OFF + 32*16}
    v_add_u32 v159, s84, v3
    """)
    a("s_waitcnt vmcnt(8)")
    stamp(3)
    for g in range(2):
        for r in range(4):
            a(f"ds_write_b32 v158, v{40+4*g+r} offset:{1024*g+128*r}")
    for i in range(8):
        o = 128 * (7 - i)
        a(f"""
        s_waitcnt vmcnt({7-i})
        ds_write_b16 v157, v{128+i} offset:{o}
        ds_write_b16 v157, v{128+i} offset:{o + UR_O - 2}
        ds_write_b16_d16_hi v157, v{128+i} offset:{o + IMG_STRIDE}
        ds_write_b16_d16_hi v157, v{128+i} offset:{o + IMG_STRIDE + UR_O - 2}
        """)
    a(f"""
    s_waitcnt lgkmcnt(0)
    s_barrier
    """)
    stamp(4)
    for e in range(16):
        b = 40 + 2 * e
        a(f"ds_read_b32 v{b}, v{136+e}")
    for i in range(32):
        a(f"v_mov_b32 v{160+i}, 0")
    a("s_waitcnt lgkmcnt(0)")
    for uu in range(2):
        for i in range(4):
            e0 = 40 + 16 * uu + 4 * i
            e1 = e0 + 2
            a(f"""
            v_cvt_pk_bf16_f32 v{20+8*uu+i}, v{e0}, v{e1}
            v_lshlrev_b32 v12, 16, v{20+8*uu+i}
            v_and_b32 v13, 0xffff0000, v{20+8*uu+i}
            v_sub_f32 v12, v{e0}, v12
            v_sub_f32 v13, v{e1}, v13
            v_cvt_pk_bf16_f32 v{24+8*uu+i}, v12, v13
            """)
        a(f"""
        ds_write_b128 v159, v[{20+8*uu}:{23+8*uu}] offset:{96*16*uu}
        ds_write_b128 v159, v[{24+8*uu}:{27+8*uu}] offset:{96*16*uu + 4*96*16}
        """)
    a(f"""
    s_waitcnt lgkmcnt(0)
    s_barrier
    """)
    stamp(1)
    NSET = 3
    SETB = 64
    CACC = 160

    def cv_reads(dl):
        st = SETB + 20 * (dl % NSET)
        off = 64 * (63 - dl)
        base = 152 + off // 1024
        o = (off % 1024) // 4
        a(f"ds_read2_b32 v[{st}:{st+1}], v{base} offset0:{o} offset1:{o+1}")
        a(f"ds_read2_b32 v[{st+2}:{st+3}], v{base} offset0:{o+2} offset1:{o+3}")
        n = 2
        for c in ((1, 0) if dl < 32 else (1,)):
            for hl in range(2):
                r = st + 4 + 8 * c + 4 * hl
                a(f"ds_read_b128 v[{r}:{r+3}], v156 offset:{16*(63-dl) + 512*c + 6144*hl}")
                n += 1
        return n

    cnt = {}
    cnt[0] = cv_reads(0)
    cnt[1] = cv_reads(1)
    for dl in range(64):
        if dl + 2 < 64:
            cnt[dl + 2] = cv_reads(dl + 2)
        pend = sum(cnt[x] for x in (dl + 1, dl + 2) if x < 64)
        a(f"s_waitcnt lgkmcnt({pend})")
        st = SETB + 20 * (dl % NSET)
        for c in ((1, 0) if dl < 32 else (1,)):
            for hl in range(2):
                r = st + 4 + 8 * c + 4 * hl
                acc = CACC + 16 * c
                a(f"v_mfma_f32_32x32x16_bf16 v[{acc}:{acc+15}], v[{st}:{st+3}], v[{r}:{r+3}], v[{acc}:{acc+15}]")
    stamp(2)
    a("""
    s_nop 7
    s_nop 3
    v_and_b32 v4, 31, v2
    """)
    for i in range(32):
        a(f"v_mov_b32 v{64+i}, v{CACC+i}")
    a(f"""
    s_lshl_b32 s21, s3, 12
    s_add_u32 s21, s21, {RED}
    v_add_u32 v5, s21, v3
    s_xor_b32 s21, s3, 1
    s_lshl_b32 s21, s21, 12
    s_add_u32 s21, s21, {RED}
    v_add_u32 v6, s21, v3
    s_nop 7
    s_cmp_eq_u32 s17, 0
    s_cbranch_scc1 k2_cv_sp0
    """)
    for g in range(4):
        a(f"ds_write_b128 v5, v[{64+4*g}:{67+4*g}] offset:{1024*g}")
    a("s_nop 1")
    for i in range(16):
        a(f"v_mov_b32 v{64+i}, v{80+i}")
    a("s_branch k2_cv_join")
    a.label("k2_cv_sp0")
    for g in range(4):
        a(f"ds_write_b128 v5, v[{80+4*g}:{83+4*g}] offset:{1024*g}")
    a.label("k2_cv_join")
    a(f"""
    s_waitcnt lgkmcnt(0)
    s_barrier
    """)
    for g in range(4):
        a(f"ds_read_b128 v[{100+4*g}:{103+4*g}], v6 offset:{1024*g}")
    a(f"""
    v_lshlrev_b32 v5, 6, v4
    v_lshrrev_b32 v7, 5, v2
    v_lshl_add_u32 v5, v7, 3, v5
    s_lshl_b32 s21, s18, 12
    s_lshl_b32 s22, s17, 11
    s_add_u32 s21, s21, s22
    s_add_u32 s21, s21, {YT}
    s_waitcnt lgkmcnt(0)
    """)
    for g in range(4):
        for r in range(4):
            a(f"v_add_f32 v{64+4*g+r}, v{64+4*g+r}, v{100+4*g+r}")
        a(f"""
        v_cvt_pk_bf16_f32 v{120+2*g}, v{64+4*g}, v{65+4*g}
        v_cvt_pk_bf16_f32 v{121+2*g}, v{66+4*g}, v{67+4*g}
        buffer_store_dwordx2 v[{120+2*g}:{121+2*g}], v5, s[80:83], s21 offen offset:{16*g}
        """)
    stamp_flush(1)
    a("s_endpgm")

    a.label("k2_gemm")
    if "gemm1" in SKIP: a("s_endpgm")
    if os.environ.get("PRIO", "1") != "0": a("s_setprio 3")
    SREG[0] = 100
    stamp(0)
    a(f"""
    s_sub_u32 s16, s2, {K2_CV}
    s_and_b32 s17, s16, 15
    s_lshr_b32 s18, s16, 4
    s_lshl_b32 s19, s18, 2
    s_add_u32 s19, s19, s3
    s_lshl_b32 s20, s17, 2
    s_add_u32 s21, s20, s3
    s_lshl_b32 s22, s19, 16
    s_add_u32 s22, s22, {WGF}
    s_add_u32 s23, s22, 32768
    s_lshl_b32 s24, s21, 15
    s_add_u32 s24, s24, {XNF}
    s_mul_i32 s25, s3, 3072
    v_add_u32 v4, s25, v3
    v_add_u32 v5, {3*12288}, v4
    v_add_u32 v6, {3*12288}, v3
    """)
    NB = 6

    def dma_parts(k):
        b = k % NB
        return [
            f"""s_add_u32 s26, s25, {b*12288}
            s_mov_b32 m0, s26
            s_add_u32 s26, s26, 1024
            buffer_load_dwordx4 v3, s[80:83], s22 offen lds
            s_add_u32 s22, s22, 1024""",
            f"""s_mov_b32 m0, s26
            s_add_u32 s26, s26, 1024
            buffer_load_dwordx4 v3, s[80:83], s23 offen lds
            s_add_u32 s23, s23, 1024""",
            f"""s_mov_b32 m0, s26
            s_nop 0
            buffer_load_dwordx4 v3, s[80:83], s24 offen lds
            s_add_u32 s24, s24, 1024""",
        ]

    def read_parts(k):
        b = k % NB
        f = 16 + 24 * (k % 2)
        va = 4 if b < 3 else 5
        vb = 3 if b < 3 else 6
        bo = (b % 3) * 12288
        out = [f"ds_read_b128 v[{f}:{f+3}], v{va} offset:{bo}",
               f"ds_read_b128 v[{f+8}:{f+11}], v{vb} offset:{bo + 2048}",
               f"ds_read_b128 v[{f+4}:{f+7}], v{va} offset:{bo + 1024}"]
        for t in range(1, 4):
            out.append(f"ds_read_b128 v[{f+8+4*t}:{f+11+4*t}], v{vb} offset:{bo + 3072*t + 2048}")
        return out

    for k in range(5):
        for p in dma_parts(k):
            a(p)
    ACC = 128
    for i in range(128):
        a(f"v_mov_b32 v{ACC+i}, 0")
    a("""
    s_waitcnt vmcnt(12)
    s_barrier
    """)
    stamp(1)
    for p in read_parts(0):
        a(p)
    for k in range(32):
        n = 3 * max(0, min(k + 4, 31) - (k + 1))
        if k + 1 < 32:
            a(f"s_waitcnt vmcnt({n}) lgkmcnt(0)")
            a("s_barrier")
        else:
            a("s_waitcnt lgkmcnt(0)")
        if k == 16: stamp(2)
        rp = read_parts(k + 1) if k + 1 < 32 else []
        dp = dma_parts(k + 5) if k + 5 < 32 else []
        f = 16 + 24 * (k % 2)
        mf = []
        for t in range(4):
            for gu in range(2):
                acc = ACC + 64 * gu + 16 * t
                mf.append(f"v_mfma_f32_32x32x16_bf16 v[{acc}:{acc+15}], v[{f+4*gu}:{f+4*gu+3}], v[{f+8+4*t}:{f+11+4*t}], v[{acc}:{acc+15}]")
        fill = [rp[0:2], rp[2:4], rp[4:6], dp[0:1], dp[1:2], dp[2:3], [], []]
        for m, fl in zip(mf, fill):
            a(m)
            for x in fl:
                a(x)
    stamp(3)
    K0 = hx(f2u(-2.0 * 0.7978845608028654 * L2E))
    K1c = hx(f2u(-2.0 * 0.7978845608028654 * 0.044715 * L2E))
    a(f"""
    v_mov_b32 v60, {K0}
    v_mov_b32 v62, {K1c}
    v_mov_b32 v64, 1.0
    s_mul_i32 s28, s20, {112*1024}
    s_lshl_b32 s29, s19, 11
    s_add_u32 s28, s28, s29
    s_add_u32 s28, s28, {HF}
    s_nop 7
    """)
    for t in range(4):
        for half in range(2):
            o = 16 + 4 * ((2 * t + half) % 4)
            blocks = []
            for i in range(4):
                g0 = ACC + 16 * t + 8 * half + 2 * i
                u0 = g0 + 64
                tb = 66 + 8 * i
                A, B, C, D = tb, tb + 2, tb + 4, tb + 6
                blocks.append([
                    f"v_cvt_pk_bf16_f32 v{C}, v{g0}, v{g0+1}",
                    f"v_cvt_pk_bf16_f32 v{D}, v{u0}, v{u0+1}",
                    f"v_lshlrev_b32 v{A}, 16, v{C}",
                    f"v_and_b32 v{A+1}, 0xffff0000, v{C}",
                    f"v_mul_f32 v{B}, v{A}, v{A}",
                    f"v_mul_f32 v{B+1}, v{A+1}, v{A+1}",
                    f"v_fma_f32 v{B}, v{B}, v62, v60",
                    f"v_fma_f32 v{B+1}, v{B+1}, v62, v60",
                    f"v_mul_f32 v{B}, v{B}, v{A}",
                    f"v_mul_f32 v{B+1}, v{B+1}, v{A+1}",
                    f"v_exp_f32 v{B}, v{B}",
                    f"v_exp_f32 v{B+1}, v{B+1}",
                    f"v_lshlrev_b32 v{C}, 16, v{D}",
                    f"v_and_b32 v{C+1}, 0xffff0000, v{D}",
                    f"v_add_f32 v{B}, 1.0, v{B}",
                    f"v_add_f32 v{B+1}, 1.0, v{B+1}",
                    f"v_rcp_f32 v{B}, v{B}",
                    f"v_rcp_f32 v{B+1}, v{B+1}",
                    f"v_mul_f32 v{B}, v{B}, v{A}",
                    f"v_mul_f32 v{B+1}, v{B+1}, v{A+1}",
                    f"v_cvt_pk_bf16_f32 v{B}, v{B}, v{B+1}",
                    f"v_lshlrev_b32 v{A}, 16, v{B}",
                    f"v_and_b32 v{A+1}, 0xffff0000, v{B}",
                    f"v_mul_f32 v{A}, v{A}, v{C}",
                    f"v_mul_f32 v{A+1}, v{A+1}, v{C+1}",
                    f"v_cvt_pk_bf16_f32 v{o+i}, v{A}, v{A+1}",
                ])
            for j in range(len(blocks[0])):
                for bl in blocks:
                    a(bl[j])
            a(f"buffer_store_dwordx4 v[{o}:{o+3}], v3, s[80:83], s28 offen offset:{1024*half}")
        a(f"s_add_u32 s28, s28, {112*1024}")
    stamp_flush(1)
    a.label("k2_end")
    a("s_endpgm")


K3_TOTAL = 256
K3_LDS = 131072


def gen_k3():
    a.raw(".text")
    a.raw(".globl k3_kernel")
    a.raw(".p2align 8")
    a.raw(".type k3_kernel,@function")
    a.label("k3_kernel")
    NW = 8
    KS = 112 // NW
    a(f"""
    s_cmp_ge_u32 s2, {K3_TOTAL}
    s_cbranch_scc1 k3_end
    s_load_dwordx2 s[14:15], s[0:1], 104
    s_load_dwordx2 s[4:5], s[0:1], 0
    s_load_dwordx2 s[6:7], s[0:1], 48
    s_load_dwordx2 s[8:9], s[0:1], 88
    v_lshrrev_b32 v1, 6, v0
    v_and_b32 v2, 63, v0
    v_readfirstlane_b32 s3, v1
    v_lshlrev_b32 v3, 4, v2
    s_lshr_b32 s18, s2, 3
    s_and_b32 s16, s18, 7
    s_lshr_b32 s18, s18, 3
    s_and_b32 s17, s2, 7
    s_lshl_b32 s17, s17, 2
    s_add_u32 s17, s17, s18
    s_waitcnt lgkmcnt(0)
    """)
    ws_srd(80)
    a(f"""
    s_mul_i32 s18, s3, {KS*1024}
    s_mul_i32 s20, s16, {2*112*1024}
    s_add_u32 s20, s20, s18
    s_add_u32 s20, s20, {WDF}
    s_add_u32 s21, s20, {112*1024}
    s_mul_i32 s22, s17, {2*112*1024}
    s_add_u32 s22, s22, s18
    s_add_u32 s22, s22, {HF}
    s_add_u32 s23, s22, {112*1024}
    """)
    SREG[0] = 90
    stamp(0)
    PD = 6
    FB = 96

    def ld(ks):
        f = FB + 16 * (ks % PD)
        o = 1024 * (ks % 4)
        a(f"""
        buffer_load_dwordx4 v[{f}:{f+3}], v3, s[80:83], s20 offen offset:{o}
        buffer_load_dwordx4 v[{f+8}:{f+11}], v3, s[80:83], s22 offen offset:{o}
        buffer_load_dwordx4 v[{f+4}:{f+7}], v3, s[80:83], s21 offen offset:{o}
        buffer_load_dwordx4 v[{f+12}:{f+15}], v3, s[80:83], s23 offen offset:{o}
        """)
        if ks % 4 == 3:
            a(f"""
            s_add_u32 s20, s20, 4096
            s_add_u32 s21, s21, 4096
            s_add_u32 s22, s22, 4096
            s_add_u32 s23, s23, 4096
            """)

    for ks in range(PD):
        ld(ks)
    a(f"""
    s_mov_b32 s84, s4
    s_and_b32 s85, s5, 0xffff
    s_mov_b32 s86, 0x200000
    s_mov_b32 s87, 0x00020000
    s_mov_b32 s88, s6
    s_and_b32 s89, s7, 0xffff
    s_mov_b32 s90, 1024
    s_mov_b32 s91, 0x00020000
    s_mov_b32 s92, s8
    s_and_b32 s93, s9, 0xffff
    s_mov_b32 s94, 0x200000
    s_mov_b32 s95, 0x00020000
    """)
    a(f"""
    s_lshr_b32 s24, s3, 2
    s_lshr_b32 s25, s3, 1
    s_and_b32 s25, s25, 1
    s_and_b32 s35, s3, 1
    s_lshl_b32 s26, s16, 1
    s_add_u32 s26, s26, s24
    s_lshl_b32 s27, s17, 1
    s_add_u32 s27, s27, s25
    v_and_b32 v4, 31, v2
    v_lshrrev_b32 v5, 5, v2
    v_lshlrev_b32 v6, 10, v4
    v_lshl_add_u32 v6, v5, 3, v6
    s_lshl_b32 s28, s27, 15
    s_lshl_b32 s29, s26, 6
    s_lshl_b32 s36, s35, 5
    s_add_u32 s29, s29, s36
    s_add_u32 s28, s28, s29
    v_lshlrev_b32 v7, 4, v4
    v_lshl_add_u32 v7, v5, 3, v7
    s_lshl_b32 s30, s27, 15
    s_lshl_b32 s31, s26, 11
    s_add_u32 s30, s30, s31
    s_lshl_b32 s36, s35, 10
    s_add_u32 s30, s30, s36
    s_add_u32 s30, s30, {XNF}
    v_lshlrev_b32 v8, 3, v5
    v_lshlrev_b32 v9, 14, v5
    v_lshl_add_u32 v9, v4, 1, v9
    s_lshl_b32 s32, s26, 17
    s_lshl_b32 s33, s27, 6
    s_add_u32 s32, s32, s33
    s_lshl_b32 s36, s35, 16
    s_add_u32 s32, s32, s36
    s_add_u32 s32, s32, {YT}
    """)
    for g in range(2):
        a(f"buffer_load_dwordx2 v[{10+2*g}:{11+2*g}], v6, s[84:87], s28 offen offset:{16*g}")
        a(f"buffer_load_dwordx2 v[{18+2*g}:{19+2*g}], v7, s[80:83], s30 offen offset:{g*512}")
        a(f"buffer_load_dwordx2 v[{26+2*g}:{27+2*g}], v8, s[88:91], s29 offen offset:{16*g}")
    for g in range(2):
        for r in range(4):
            if r == 0:
                a(f"s_add_u32 s33, s32, {8*g*4096}")
            else:
                a(f"s_add_u32 s33, s33, 4096")
            a(f"buffer_load_ushort v{34+4*g+r}, v9, s[80:83], s33 offen")
    NEP = 14
    ACC = 192
    for i in range(64):
        a(f"v_mov_b32 v{ACC+i}, 0")
    for ks in range(KS):
        later_sets = min(ks + PD - 1, KS - 1) - ks
        n = 4 * later_sets + (NEP if ks < PD else 0)
        a(f"s_waitcnt vmcnt({min(n,63)})")
        if ks == 0: stamp(1)
        if ks == KS // 2: stamp(2)
        f = FB + 16 * (ks % PD)
        for ta in range(2):
            for tb in range(2):
                acc = ACC + 16 * (2 * ta + tb)
                a(f"v_mfma_f32_32x32x16_bf16 v[{acc}:{acc+15}], v[{f+4*ta}:{f+4*ta+3}], v[{f+8+4*tb}:{f+11+4*tb}], v[{acc}:{acc+15}]")
        if ks + PD < KS:
            ld(ks + PD)
    stamp(3)
    a(f"""
    s_lshl_b32 s34, s3, 14
    v_add_u32 v50, s34, v3
    s_lshl_b32 s34, s3, 11
    v_add_u32 v51, s34, v3
    v_add_u32 v49, 65536, v51
    s_nop 7
    """)
    for t in range(4):
        for g in range(4):
            a(f"ds_write_b128 v50, v[{ACC+16*t+4*g}:{ACC+16*t+4*g+3}] offset:{4096*t + 1024*g}")
    a(f"""
    s_waitcnt lgkmcnt(0)
    s_barrier
    """)
    stamp(4)
    for w in range(8):
        for g in range(2):
            a(f"ds_read_b128 v[{96+8*w+4*g}:{96+8*w+4*g+3}], v{51 if w < 4 else 49} offset:{16384*(w%4) + 1024*g}")
    a(f"""
    s_mov_b32 s34, {hx(L2E_HI | 0x80000000)}
    s_waitcnt lgkmcnt(0)
    """)
    for i in range(8):
        a(f"""
        v_add_f32 v{96+i}, v{96+i}, v{104+i}
        v_add_f32 v{112+i}, v{112+i}, v{120+i}
        v_add_f32 v{128+i}, v{128+i}, v{136+i}
        v_add_f32 v{144+i}, v{144+i}, v{152+i}
        """)
    for i in range(8):
        a(f"""
        v_add_f32 v{96+i}, v{96+i}, v{112+i}
        v_add_f32 v{128+i}, v{128+i}, v{144+i}
        """)
    for i in range(8):
        a(f"v_add_f32 v{96+i}, v{96+i}, v{128+i}")
    a("s_waitcnt vmcnt(0)")
    for g in range(2):
        for p in range(2):
            c0 = 96 + 4 * g + 2 * p
            xr = 10 + 2 * g + p
            nr = 18 + 2 * g + p
            dr = 26 + 2 * g + p
            y0 = 34 + 4 * g + 2 * p
            a(f"""
            v_cvt_pk_bf16_f32 v52, v{c0}, v{c0+1}
            v_lshlrev_b32 v53, 16, v52
            v_and_b32 v54, 0xffff0000, v52
            v_mul_f32 v55, s34, v53
            v_mul_f32 v56, s34, v54
            v_exp_f32 v55, v55
            v_exp_f32 v56, v56
            v_lshlrev_b32 v57, 16, v{nr}
            v_and_b32 v58, 0xffff0000, v{nr}
            v_lshlrev_b32 v59, 16, v{dr}
            v_and_b32 v60, 0xffff0000, v{dr}
            v_add_f32 v55, 1.0, v55
            v_add_f32 v56, 1.0, v56
            v_rcp_f32 v55, v55
            v_rcp_f32 v56, v56
            v_mul_f32 v57, v57, v59
            v_mul_f32 v58, v58, v60
            v_mul_f32 v55, v55, v53
            v_mul_f32 v56, v56, v54
            v_cvt_pk_bf16_f32 v57, v57, v58
            v_cvt_pk_bf16_f32 v55, v55, v56
            v_lshlrev_b32 v59, 16, v{y0}
            v_lshlrev_b32 v60, 16, v{y0+1}
            v_and_b32 v58, 0xffff0000, v57
            v_lshlrev_b32 v57, 16, v57
            v_add_f32 v57, v57, v59
            v_add_f32 v58, v58, v60
            v_cvt_pk_bf16_f32 v57, v57, v58
            v_and_b32 v56, 0xffff0000, v55
            v_lshlrev_b32 v55, 16, v55
            v_and_b32 v58, 0xffff0000, v57
            v_lshlrev_b32 v57, 16, v57
            v_mul_f32 v57, v57, v55
            v_mul_f32 v58, v58, v56
            v_cvt_pk_bf16_f32 v57, v57, v58
            v_lshlrev_b32 v59, 16, v{xr}
            v_and_b32 v60, 0xffff0000, v{xr}
            v_and_b32 v58, 0xffff0000, v57
            v_lshlrev_b32 v57, 16, v57
            v_add_f32 v57, v57, v59
            v_add_f32 v58, v58, v60
            v_cvt_pk_bf16_f32 v{64+2*g+p}, v57, v58
            """)
        a(f"buffer_store_dwordx2 v[{64+2*g}:{65+2*g}], v6, s[92:95], s28 offen offset:{16*g}")
    stamp_flush(2)
    a.label("k3_end")
    a("s_endpgm")


def descriptor(name, vgpr):
    a.raw(f""".amdhsa_kernel {name}
  .amdhsa_next_free_vgpr {vgpr}
  .amdhsa_next_free_sgpr 102
  .amdhsa_accum_offset {((vgpr+3)//4)*4}
  .amdhsa_group_segment_fixed_size 0
  .amdhsa_kernarg_size 112
  .amdhsa_user_sgpr_count 2
  .amdhsa_user_sgpr_kernarg_segment_ptr 1
  .amdhsa_system_sgpr_workgroup_id_x 1
.end_amdhsa_kernel""")


def main():
    hdr = open(f"cdna_kernels/{NAME}.s.ref").read().split("\n")
    keep = []
    for ln in hdr:
        if not ln.startswith(";"):
            break
        if "@launch" in ln or "Override launch" in ln or "grid=ceil" in ln:
            continue
        keep.append(ln)
    out = "\n".join(keep) + "\n"
    out += f"; @launch kernel=k1_kernel grid=({K1_TOTAL},1,1) block=(256,1,1) lds=20480\n"
    out += f"; @launch kernel=k2_kernel grid=({K2_TOTAL},1,1) block=(256,1,1) lds={K2_LDS}\n"
    out += f"; @launch kernel=k3_kernel grid=({K3_TOTAL},1,1) block=(512,1,1) lds={K3_LDS}\n"
    out += '.amdgcn_target "amdgcn-amd-amdhsa--gfx950"\n'
    gen_k1()
    gen_k2()
    gen_k3()
    a.raw('.section .rodata,"a"')
    a.raw(".p2align 6")
    descriptor("k1_kernel", 128)
    a.raw(".p2align 6")
    descriptor("k2_kernel", 256)
    a.raw(".p2align 6")
    descriptor("k3_kernel", 256)
    out += a.text()
    path = sys.argv[1] if len(sys.argv) > 1 else f"cdna_kernels/{NAME}.s"
    open(path, "w").write(out)
    print("wrote", path, len(out), "bytes")


main()
```

```python
import struct, sys
import numpy as np

NAME = "recurrent_scan__ssm_conv_s4d__geglu_ffn__prompt"


def f2u(x):
    return struct.unpack("<I", struct.pack("<f", np.float32(x)))[0]


def hx(x):
    return "0x%08x" % (x & 0xFFFFFFFF)


L2E = 1.4426950408889634
L2E_HI = f2u(L2E)
L2E_LO = f2u(L2E - float(np.float32(L2E)))
I2P = 0.15915494309189535
I2P_HI = f2u(I2P)
I2P_LO = f2u(I2P - float(np.float32(I2P)))
LN2 = f2u(0.6931471805599453)

XNF = 0x0
IMG = 0x200000
IMG_STRIDE = 21504
UR_O = 4160
KF_OFF = 9216
KT = 0x200000
WGF = 0xC80000
WDF = 0x1000000
HF = 0x1200000
YT = 0x1900000
WS_SIZE = 0x1B00000


class Asm:
    def __init__(self):
        self.lines = []

    def __call__(self, s):
        for ln in s.strip("\n").split("\n"):
            ln = ln.strip()
            if ln:
                self.lines.append("    " + ln)

    def label(self, l):
        self.lines.append(l + ":")

    def raw(self, s):
        self.lines.append(s)

    def text(self):
        return "\n".join(self.lines) + "\n"


a = Asm()
import os
SKIP = os.environ.get("SKIP", "").split(",")
PR = [int(c) for c in os.environ.get("PR", "3011")]
STAMPS = os.environ.get("STAMPS", "") != ""
STAMP_BASE = 0x1B00000
if STAMPS:
    WS_SIZE = 0x1C00000
SREG = [170]


def stamp(i):
    if not STAMPS:
        return
    a(f"""
    s_memtime s[100:101]
    s_waitcnt lgkmcnt(0)
    v_writelane_b32 v{SREG[0]}, s100, {i}
    """)
    if i == 0:
        a(f"""
        s_memrealtime s[100:101]
        s_waitcnt lgkmcnt(0)
        v_writelane_b32 v{SREG[0]}, s100, 5
        """)


def stamp_flush(kid):
    if not STAMPS:
        return
    a(f"""
    s_memtime s[100:101]
    s_waitcnt lgkmcnt(0)
    v_writelane_b32 v{SREG[0]}, s100, 7
    s_memrealtime s[100:101]
    s_waitcnt lgkmcnt(0)
    v_writelane_b32 v{SREG[0]}, s100, 6
    s_lshl_b32 s100, s2, 3
    s_add_u32 s100, s100, s3
    s_lshl_b32 s100, s100, 5
    s_add_u32 s100, s100, {STAMP_BASE + kid*0x40000}
    v_lshlrev_b32 v{SREG[0]+1}, 2, v2
    v_cmp_gt_u32 vcc, 8, v2
    s_and_saveexec_b64 s[98:99], vcc
    buffer_store_dword v{SREG[0]}, v{SREG[0]+1}, s[80:83], s100 offen
    s_mov_b64 exec, s[98:99]
    """)

K1_KG = 512
K1_LN = 64
K1_SG = 224
K1_SD = 0
K1_TOTAL = K1_KG + K1_LN + K1_SG + K1_SD


def ws_srd(dst, base_lo=14, base_hi=15):
    a(f"""
    s_mov_b32 s{dst}, s{base_lo}
    s_and_b32 s{dst+1}, s{base_hi}, 0xffff
    s_mov_b32 s{dst+2}, {hx(WS_SIZE)}
    s_mov_b32 s{dst+3}, 0x00020000
    """)


def gen_k1():
    a.raw(".text")
    a.raw(".globl k1_kernel")
    a.raw(".p2align 8")
    a.raw(".type k1_kernel,@function")
    a.label("k1_kernel")
    a(f"""
    s_cmp_ge_u32 s2, {K1_TOTAL}
    s_cbranch_scc1 k1_end
    s_load_dwordx2 s[14:15], s[0:1], 104
    v_lshrrev_b32 v1, 6, v0
    v_and_b32 v2, 63, v0
    v_readfirstlane_b32 s3, v1
    s_cmp_lt_u32 s2, {K1_LN}
    s_cbranch_scc1 k1_ln
    s_cmp_lt_u32 s2, {K1_KG + K1_LN}
    s_cbranch_scc1 k1_kgen
    s_branch k1_shg
    """)
    a.label("k1_kgen")
    if "kgen" in SKIP: a("s_endpgm")
    a("s_mov_b32 s97, s2")
    a(f"s_sub_u32 s2, s2, {K1_LN}")
    SREG[0] = 38
    stamp(0)
    a(f"""
    s_load_dwordx8 s[4:11], s[0:1], 8
    s_load_dwordx2 s[12:13], s[0:1], 40
    v_and_b32 v3, 31, v2
    s_lshl_b32 s84, s2, 8
    s_lshl_b32 s85, s3, 6
    s_add_u32 s84, s84, s85
    v_lshlrev_b32 v9, 1, v3
    v_add_u32 v9, s84, v9
    s_waitcnt lgkmcnt(0)
    """)
    ws_srd(80)
    for i in range(4):
        a(f"""
        s_mov_b32 s{16+4*i}, s{4+2*i}
        s_and_b32 s{17+4*i}, s{5+2*i}, 0xffff
        s_mov_b32 s{18+4*i}, 131072
        s_mov_b32 s{19+4*i}, 0x00020000
        """)
    a(f"""
    s_lshr_b32 s85, s2, 1
    s_lshl_b32 s85, s85, 2
    s_add_u32 s12, s12, s85
    s_addc_u32 s13, s13, 0
    s_load_dword s86, s[12:13], 0
    buffer_load_ushort v10, v9, s[16:19], 0 offen
    buffer_load_ushort v11, v9, s[20:23], 0 offen
    buffer_load_ushort v12, v9, s[24:27], 0 offen
    buffer_load_ushort v13, v9, s[28:31], 0 offen
    s_mov_b32 s88, {hx(L2E_HI)}
    s_mov_b32 s89, {hx(L2E_LO)}
    s_mov_b32 s90, {hx(I2P_HI)}
    s_mov_b32 s91, {hx(I2P_LO)}
    v_lshlrev_b32 v20, 1, v3
    v_add_u32 v20, 240, v20
    v_subrev_u32 v21, 12, v3
    v_lshrrev_b32 v22, 1, v21
    v_lshlrev_b32 v22, 8, v22
    v_and_b32 v21, 1, v21
    v_lshlrev_b32 v21, 2, v21
    v_add_u32 v21, v21, v22
    v_add_u32 v21, 512, v21
    v_subrev_u32 v22, 12, v3
    v_lshlrev_b32 v22, 8, v22
    v_mov_b32 v23, 0
    v_mov_b32 v5, v3
    v_cmp_le_u32 vcc, 8, v3
    s_nop 1
    v_cndmask_b32 v5, v5, v20, vcc
    v_cmp_le_u32 vcc, 12, v3
    s_nop 1
    v_cndmask_b32 v5, v5, v21, vcc
    v_cmp_le_u32 vcc, 16, v3
    s_nop 1
    v_cndmask_b32 v5, v5, v22, vcc
    v_cmp_le_u32 vcc, 21, v3
    s_nop 1
    v_cndmask_b32 v5, v5, v23, vcc
    v_cvt_f32_u32 v5, v5
    v_lshlrev_b32 v6, 3, v3
    v_cvt_f32_u32 v6, v6
    s_mul_i32 s87, s3, 640
    s_add_u32 s87, s87, 16384
    v_lshlrev_b32 v4, 2, v3
    v_add_u32 v4, s87, v4
    v_lshrrev_b32 v9, 5, v2
    v_lshlrev_b32 v9, 4, v9
    v_add_u32 v9, s87, v9
    """)
    for i in range(16):
        a(f"v_mov_b32 v{80+i}, 0")
    a(f"""
    s_waitcnt lgkmcnt(0)
    s_lshr_b32 s87, s86, 16
    s_and_b32 s86, s86, 0xffff
    s_bitcmp1_b32 s2, 0
    s_cselect_b32 s86, s87, s86
    s_lshl_b32 s86, s86, 16
    v_mov_b32 v24, s86
    v_mul_f32 v14, s88, v24
    v_fma_f32 v15, v24, s88, -v14
    v_fma_f32 v15, v24, s89, v15
    v_exp_f32 v16, v14
    v_mul_f32 v15, {hx(LN2)}, v15
    s_nop 0
    v_fma_f32 v16, v16, v15, v16
    v_cvt_pk_bf16_f32 v16, v16, v16
    v_lshlrev_b32 v7, 16, v16
    v_add_f32 v8, v7, v7
    s_waitcnt vmcnt(0)
    v_lshlrev_b32 v10, 16, v10
    v_lshlrev_b32 v11, 16, v11
    v_lshlrev_b32 v12, 16, v12
    v_lshlrev_b32 v13, 16, v13
    v_mul_f32 v14, s88, v10
    v_fma_f32 v15, v10, s88, -v14
    v_fma_f32 v15, v10, s89, v15
    v_exp_f32 v16, v14
    v_mul_f32 v15, {hx(LN2)}, v15
    v_mul_f32 v11, v11, v7
    v_fma_f32 v16, v16, v15, v16
    v_mul_f32 v18, s90, v11
    v_cvt_pk_bf16_f32 v16, v16, v16
    v_fma_f32 v19, v11, s90, -v18
    v_lshlrev_b32 v16, 16, v16
    v_fma_f32 v19, v11, s91, v19
    v_mul_f32 v16, v16, v7
    v_mul_f32 v20, v12, v8
    v_mul_f32 v21, v13, v8
    v_mul_f32 v17, {hx(L2E_HI | 0x80000000)}, v16
    ds_write_b32 v4, v18 offset:128
    ds_write_b32 v4, v19 offset:256
    ds_write_b32 v4, v20 offset:384
    ds_write_b32 v4, v21 offset:512
    ds_write_b32 v4, v17 offset:0
    s_waitcnt lgkmcnt(0)
    """)
    stamp(1)

    def kg_read(g):
        pb = 40 + 20 * (g % 2)
        for p in range(5):
            a(f"ds_read_b128 v[{pb+4*p}:{pb+4*p+3}], v9 offset:{128*p + 32*g}")

    kg_read(0)
    for g in range(4):
        if g + 1 < 4:
            kg_read(g + 1)
            a("s_waitcnt lgkmcnt(5)")
        else:
            a("s_waitcnt lgkmcnt(0)")
        pb = 40 + 20 * (g % 2)
        for pair in range(2):
            stages = [[] for _ in range(16)]
            for m in range(2):
                i = 2 * pair + m
                ard2, whi, wlo, cr2, ci2 = (pb + 4 * p + i for p in range(5))
                t = 10 + 12 * m
                rA, rlA, eA, sA, cA, t1, t2, rB, rlB, eB, sB, cB = range(t, t + 12)
                Gr, nGi, Fr, Fi = 96 + 2 * i, 97 + 2 * i, 104 + 2 * i, 105 + 2 * i
                seq = [
                    [f"v_mul_f32 v{rA}, v{whi}, v5", f"v_mul_f32 v{rB}, v{whi}, v6"],
                    [f"v_mul_f32 v{eA}, v{ard2}, v5", f"v_mul_f32 v{eB}, v{ard2}, v6"],
                    [f"v_fma_f32 v{rlA}, v{whi}, v5, -v{rA}", f"v_fma_f32 v{rlB}, v{whi}, v6, -v{rB}"],
                    [f"v_exp_f32 v{eA}, v{eA}", f"v_exp_f32 v{eB}, v{eB}"],
                    [f"v_fma_f32 v{rlA}, v{wlo}, v5, v{rlA}", f"v_fma_f32 v{rlB}, v{wlo}, v6, v{rlB}"],
                    [f"v_fract_f32 v{rA}, v{rA}", f"v_fract_f32 v{rB}, v{rB}"],
                    [f"v_add_f32 v{rA}, v{rA}, v{rlA}", f"v_add_f32 v{rB}, v{rB}, v{rlB}"],
                    [f"v_sin_f32 v{sA}, v{rA}", f"v_cos_f32 v{cA}, v{rA}"],
                    [f"v_sin_f32 v{sB}, v{rB}", f"v_cos_f32 v{cB}, v{rB}"],
                    [f"v_mul_f32 v{t1}, v{ci2}, v{sA}", f"v_mul_f32 v{t2}, v{ci2}, v{cA}"],
                    [f"v_fma_f32 v{t1}, v{cr2}, v{cA}, -v{t1}", f"v_fma_f32 v{t2}, v{cr2}, v{sA}, v{t2}"],
                    [f"v_mul_f32 v{Fr}, v{eB}, v{cB}", f"v_mul_f32 v{Fi}, v{eB}, v{sB}"],
                    [f"v_mul_f32 v{Gr}, v{eA}, v{t1}", f"v_mul_f32_e64 v{nGi}, -v{eA}, v{t2}"],
                    [f"v_cvt_pk_bf16_f32 v{120+i}, v{Fr}, v{Fi}", f"v_cvt_pk_bf16_f32 v{112+i}, v{Gr}, v{nGi}"],
                    [f"v_lshlrev_b32 v{rA}, 16, v{120+i}", f"v_and_b32 v{rlA}, 0xffff0000, v{120+i}",
                     f"v_lshlrev_b32 v{rB}, 16, v{112+i}", f"v_and_b32 v{rlB}, 0xffff0000, v{112+i}"],
                    [f"v_sub_f32 v{Fr}, v{Fr}, v{rA}", f"v_sub_f32 v{Fi}, v{Fi}, v{rlA}",
                     f"v_sub_f32 v{Gr}, v{Gr}, v{rB}", f"v_sub_f32 v{nGi}, v{nGi}, v{rlB}",
                     f"v_cvt_pk_bf16_f32 v{124+i}, v{Fr}, v{Fi}", f"v_cvt_pk_bf16_f32 v{116+i}, v{Gr}, v{nGi}"],
                ]
                for k, st in enumerate(seq):
                    stages[k] += st
            for st in stages:
                for ins in st:
                    a(ins)
        a(f"""
        s_nop 1
        v_mfma_f32_32x32x16_bf16 v[80:95], v[112:115], v[120:123], v[80:95]
        v_mfma_f32_32x32x16_bf16 v[80:95], v[112:115], v[124:127], v[80:95]
        v_mfma_f32_32x32x16_bf16 v[80:95], v[116:119], v[120:123], v[80:95]
        """)
    stamp(2)
    a(f"""
    s_lshl_b32 s84, s3, 12
    v_lshlrev_b32 v10, 4, v2
    v_add_u32 v11, s84, v10
    s_lshl_b32 s84, s3, 10
    v_add_u32 v12, s84, v10
    s_lshl_b32 s85, s2, 12
    s_add_u32 s85, s85, s84
    s_add_u32 s85, s85, {KT}
    s_nop 10
    """)
    for g in range(3):
        a(f"ds_write_b128 v11, v[{80+4*g}:{83+4*g}] offset:{1024*g}")
    a(f"""
    s_waitcnt lgkmcnt(0)
    s_barrier
    s_cmp_eq_u32 s3, 3
    s_cbranch_scc1 k1_end
    """)
    stamp(3)
    for w in range(4):
        a(f"ds_read_b128 v[{40+4*w}:{43+4*w}], v12 offset:{4096*w}")
    a("s_waitcnt lgkmcnt(0)")
    for r in range(4):
        a(f"""
        v_add_f32 v{40+r}, v{40+r}, v{44+r}
        v_add_f32 v{48+r}, v{48+r}, v{52+r}
        """)
    for r in range(4):
        a(f"v_add_f32 v{40+r}, v{40+r}, v{48+r}")
    a("buffer_store_dwordx4 v[40:43], v10, s[80:83], s85 offen")
    a("s_mov_b32 s2, s97")
    stamp_flush(0)
    a("s_endpgm")

    a.label("k1_ln")
    if "ln" in SKIP: a("s_endpgm")
    SREG[0] = 126
    stamp(0)
    a(f"""
    s_load_dwordx2 s[4:5], s[0:1], 0
    s_setprio 3
    s_mov_b32 s16, s2
    s_lshl_b32 s16, s16, 2
    s_add_u32 s16, s16, s3
    s_lshl_b32 s17, s16, 3
    s_lshl_b32 s18, s17, 10
    v_lshlrev_b32 v3, 4, v2
    s_waitcnt lgkmcnt(0)
    """)
    ws_srd(80)
    a(f"""
    s_mov_b32 s84, s4
    s_and_b32 s85, s5, 0xffff
    s_mov_b32 s86, 0x200000
    s_mov_b32 s87, 0x00020000
    """)
    for r in range(8):
        if r == 4:
            a("s_add_u32 s18, s18, 4096")
        a(f"buffer_load_dwordx4 v[{8+4*r}:{11+4*r}], v3, s[84:87], s18 offen offset:{(r%4)*1024}")

    def val(r, k):
        return 40 + 8 * r + k

    SUM = 104
    for r in range(8):
        a(f"s_waitcnt vmcnt({7-r})")
        for i in range(4):
            a(f"""
            v_lshlrev_b32 v{val(r,2*i)}, 16, v{8+4*r+i}
            v_and_b32 v{val(r,2*i+1)}, 0xffff0000, v{8+4*r+i}
            """)
        a(f"""
        v_pk_add_f32 v[4:5], v[{val(r,0)}:{val(r,1)}], v[{val(r,2)}:{val(r,3)}]
        v_pk_add_f32 v[6:7], v[{val(r,4)}:{val(r,5)}], v[{val(r,6)}:{val(r,7)}]
        v_pk_add_f32 v[4:5], v[4:5], v[6:7]
        v_add_f32 v{SUM+r}, v4, v5
        """)

    def dpp_reduce(base):
        for mod in ["row_shr:1 row_mask:0xf bank_mask:0xf bound_ctrl:0",
                    "row_shr:2 row_mask:0xf bank_mask:0xf bound_ctrl:0",
                    "row_shr:4 row_mask:0xf bank_mask:0xf bound_ctrl:0",
                    "row_shr:8 row_mask:0xf bank_mask:0xf bound_ctrl:0",
                    "row_bcast:15 row_mask:0xa bank_mask:0xf",
                    "row_bcast:31 row_mask:0xc bank_mask:0xf"]:
            for r in range(8):
                a(f"v_add_f32_dpp v{base+r}, v{base+r}, v{base+r} {mod}")

    stamp(1)
    a("s_nop 1")
    dpp_reduce(SUM)
    a("s_nop 1")
    for r in range(8):
        a(f"v_readlane_b32 s{20+r}, v{SUM+r}, 63")
    a("s_nop 1")
    inv512 = hx(f2u(1.0 / 512))
    for r in range(8):
        a(f"""
        v_mov_b32 v{8+4*r}, s{20+r}
        v_mul_f32 v{8+4*r}, {inv512}, v{8+4*r}
        """)
    for r in range(8):
        mu = 8 + 4 * r
        a(f"""
        v_pk_add_f32 v[4:5], v[{val(r,0)}:{val(r,1)}], v[{mu}:{mu+1}] op_sel_hi:[1,0] neg_lo:[0,1] neg_hi:[0,1]
        v_pk_add_f32 v[6:7], v[{val(r,2)}:{val(r,3)}], v[{mu}:{mu+1}] op_sel_hi:[1,0] neg_lo:[0,1] neg_hi:[0,1]
        v_pk_mul_f32 v[112:113], v[4:5], v[4:5]
        v_pk_mul_f32 v[114:115], v[6:7], v[6:7]
        v_pk_add_f32 v[4:5], v[{val(r,4)}:{val(r,5)}], v[{mu}:{mu+1}] op_sel_hi:[1,0] neg_lo:[0,1] neg_hi:[0,1]
        v_pk_add_f32 v[6:7], v[{val(r,6)}:{val(r,7)}], v[{mu}:{mu+1}] op_sel_hi:[1,0] neg_lo:[0,1] neg_hi:[0,1]
        v_pk_fma_f32 v[112:113], v[4:5], v[4:5], v[112:113]
        v_pk_fma_f32 v[114:115], v[6:7], v[6:7], v[114:115]
        v_pk_add_f32 v[112:113], v[112:113], v[114:115]
        v_add_f32 v{SUM+r}, v112, v113
        """)
    a("s_nop 1")
    dpp_reduce(SUM)
    a("s_nop 1")
    for r in range(8):
        a(f"v_readlane_b32 s{32+r}, v{SUM+r}, 63")
    a("s_nop 1")
    eps = hx(f2u(1e-5))
    RCP = [112, 114, 116, 118, 120, 122, 124, 6]
    for r in range(8):
        a(f"""
        v_mov_b32 v4, s{32+r}
        v_mul_f32 v4, {inv512}, v4
        v_cvt_pk_bf16_f32 v4, v4, v{8+4*r}
        v_and_b32 v{8+4*r}, 0xffff0000, v4
        v_lshlrev_b32 v4, 16, v4
        v_add_f32 v4, {eps}, v4
        v_cvt_pk_bf16_f32 v4, v4, v4
        v_lshlrev_b32 v4, 16, v4
        v_sqrt_f32 v4, v4
        s_nop 0
        v_cvt_pk_bf16_f32 v4, v4, v4
        v_lshlrev_b32 v{10+4*r}, 16, v4
        v_rcp_f32 v{RCP[r]}, v{10+4*r}
        """)
    stamp(2)
    a(f"""
    v_lshrrev_b32 v3, 1, v2
    v_lshlrev_b32 v3, 10, v3
    v_and_b32 v4, 1, v2
    v_lshl_add_u32 v3, v4, 9, v3
    s_lshr_b32 s19, s17, 5
    s_lshl_b32 s19, s19, 15
    s_and_b32 s18, s17, 31
    s_lshl_b32 s18, s18, 4
    s_add_u32 s18, s18, s19
    """)
    for r in range(8):
        mb, den, rc = 8 + 4 * r, 10 + 4 * r, RCP[r]
        o = 104 + 4 * (r % 2)
        for k in range(0, 8, 2):
            x0 = val(r, k)
            a(f"""
            v_pk_add_f32 v[4:5], v[{x0}:{x0+1}], v[{mb}:{mb+1}] op_sel_hi:[1,0] neg_lo:[0,1] neg_hi:[0,1]
            v_cvt_pk_bf16_f32 v4, v4, v5
            v_and_b32 v5, 0xffff0000, v4
            v_lshlrev_b32 v4, 16, v4
            v_pk_mul_f32 v[{x0}:{x0+1}], v[4:5], v[{rc}:{rc+1}] op_sel_hi:[1,0]
            v_pk_fma_f32 v[4:5], v[{x0}:{x0+1}], v[{den}:{den+1}], v[4:5] op_sel_hi:[1,0,1] neg_lo:[1,0,0] neg_hi:[1,0,0]
            v_pk_fma_f32 v[{x0}:{x0+1}], v[4:5], v[{rc}:{rc+1}], v[{x0}:{x0+1}] op_sel_hi:[1,0,1]
            v_cvt_pk_bf16_f32 v{o+k//2}, v{x0}, v{x0+1}
            """)
        a(f"buffer_store_dwordx4 v[{o}:{o+3}], v3, s[80:83], s18 offen offset:{16*r}")
    stamp_flush(0)
    a("s_endpgm")

    a.label("k1_shg")
    if "shg" in SKIP: a("s_endpgm")
    stamp(0)
    a(f"""
    s_load_dwordx4 s[4:7], s[0:1], 64
    s_sub_u32 s16, s2, {K1_KG + K1_LN}
    s_lshl_b32 s16, s16, 2
    s_add_u32 s16, s16, s3
    s_lshr_b32 s17, s16, 4
    s_lshr_b32 s18, s16, 3
    s_and_b32 s18, s18, 1
    s_and_b32 s19, s16, 7
    s_waitcnt lgkmcnt(0)
    """)
    ws_srd(80)
    a(f"""
    s_cmp_eq_u32 s18, 0
    s_cselect_b32 s84, s4, s6
    s_cselect_b32 s85, s5, s7
    s_and_b32 s85, s85, 0xffff
    s_mov_b32 s86, {512*1792*2}
    s_mov_b32 s87, 0x00020000
    v_lshrrev_b32 v3, 5, v2
    v_mul_u32_u24 v3, {8*3584}, v3
    v_and_b32 v4, 31, v2
    v_lshl_add_u32 v3, v4, 1, v3
    s_lshl_b32 s20, s17, 6
    v_add_u32 v3, s20, v3
    s_mul_i32 s20, s19, {64*3584}
    """)
    for fr in range(4):
        for e in range(8):
            a(f"""
            buffer_load_ushort v{10+8*fr+e}, v3, s[84:87], s20 offen
            s_add_u32 s20, s20, 3584
            """)
        a(f"s_add_u32 s20, s20, {8*3584}")
    a(f"""
    s_lshl_b32 s20, s17, 1
    s_add_u32 s20, s20, s18
    s_lshl_b32 s20, s20, 15
    s_lshl_b32 s21, s19, 12
    s_add_u32 s20, s20, s21
    s_add_u32 s20, s20, {WGF}
    v_lshlrev_b32 v4, 4, v2
    """)
    for fr in range(4):
        a(f"s_waitcnt vmcnt({24-8*fr})")
        for i in range(4):
            a(f"v_lshl_or_b32 v{50+4*fr+i}, v{10+8*fr+2*i+1}, 16, v{10+8*fr+2*i}")
        a(f"buffer_store_dwordx4 v[{50+4*fr}:{53+4*fr}], v4, s[80:83], s20 offen offset:{1024*fr}")
    stamp_flush(0)
    a("s_endpgm")

    a.label("k1_end")
    a("s_endpgm")


K2_CV = 256
K2_G1 = 224
K2_SD = 32
K2_TOTAL = K2_CV + K2_G1 + K2_SD
K2_LDS = 73728


def gen_k2():
    a.raw(".text")
    a.raw(".globl k2_kernel")
    a.raw(".p2align 8")
    a.raw(".type k2_kernel,@function")
    a.label("k2_kernel")
    a(f"""
    s_cmp_ge_u32 s2, {K2_TOTAL}
    s_cbranch_scc1 k2_end
    s_load_dwordx2 s[14:15], s[0:1], 104
    v_lshrrev_b32 v1, 6, v0
    v_and_b32 v2, 63, v0
    v_readfirstlane_b32 s3, v1
    v_lshlrev_b32 v3, 4, v2
    s_waitcnt lgkmcnt(0)
    """)
    ws_srd(80)
    a(f"""
    s_cmp_ge_u32 s2, {K2_CV + K2_G1}
    s_cbranch_scc1 k2_shd
    s_cmp_ge_u32 s2, {K2_CV}
    s_cbranch_scc1 k2_gemm
    """)
    if "conv" in SKIP: a("s_endpgm")
    a(f"s_setprio {PR[2]}")
    SREG[0] = 230
    stamp(0)
    RED = 2 * IMG_STRIDE
    a(f"""
    s_lshr_b32 s16, s3, 1
    s_and_b32 s17, s3, 1
    s_lshl_b32 s18, s2, 1
    s_add_u32 s18, s18, s16
    s_mul_i32 s20, s16, {IMG_STRIDE}
    """)
    a(f"""
    s_lshl_b32 s21, s18, 12
    s_lshl_b32 s22, s17, 11
    s_add_u32 s21, s21, s22
    s_add_u32 s21, s21, {KT}
    buffer_load_dwordx4 v[40:43], v3, s[80:83], s21 offen
    buffer_load_dwordx4 v[44:47], v3, s[80:83], s21 offen offset:1024
    """)
    a(f"""
    v_lshrrev_b32 v4, 5, v2
    v_lshlrev_b32 v4, 15, v4
    v_and_b32 v34, 31, v2
    v_lshl_add_u32 v4, v34, 4, v4
    s_lshr_b32 s22, s2, 2
    s_lshl_b32 s22, s22, 9
    s_and_b32 s23, s2, 3
    s_lshl_b32 s23, s23, 2
    s_add_u32 s22, s22, s23
    s_lshl_b32 s23, s3, 19
    s_add_u32 s22, s22, s23
    """)
    for i in range(8):
        a(f"buffer_load_dword v{128+i}, v4, s[80:83], s22 offen")
        if i < 7:
            a("s_add_u32 s22, s22, 65536")
    a(f"""
    v_lshrrev_b32 v24, 5, v2
    v_mul_u32_u24 v24, {96*16}, v24
    v_lshl_add_u32 v24, v34, 4, v24
    s_mul_i32 s84, s17, {4*96*16}
    s_add_u32 s84, s84, s20
    s_add_u32 s84, s84, {KF_OFF}
    v_add_u32 v24, s84, v24
    v_mov_b32 v28, 0
    v_mov_b32 v29, 0
    v_mov_b32 v30, 0
    v_mov_b32 v31, 0
    ds_write_b128 v24, v[28:31]
    ds_write_b128 v24, v[28:31] offset:{2*96*16}
    v_lshlrev_b32 v25, 1, v2
    v_add_u32 v25, {2*2048}, v25
    s_cmp_lg_u32 s3, 0
    s_cbranch_scc1 k2_cv_nozero
    v_cmp_gt_u32 vcc, 32, v2
    s_and_saveexec_b64 s[24:25], vcc
    ds_write_b16 v25, v28 offset:{UR_O}
    ds_write_b16 v25, v28 offset:{UR_O + IMG_STRIDE}
    v_cmp_gt_u32 vcc, 31, v2
    s_and_b64 exec, exec, vcc
    ds_write_b16 v25, v28 offset:2
    ds_write_b16 v25, v28 offset:{2 + IMG_STRIDE}
    s_mov_b64 exec, s[24:25]
    """)
    a.label("k2_cv_nozero")
    a(f"""
    s_lshl_b32 s84, s17, 4
    v_lshlrev_b32 v26, 5, v2
    v_add_u32 v26, s84, v26
    s_lshl_b32 s84, s16, 12
    s_add_u32 s84, s84, {RED}
    """)
    for e in range(16):
        a(f"""
        v_add_u32 v20, {e}, v26
        v_cvt_f32_u32 v20, v20
        v_cvt_pk_bf16_f32 v20, v20, v20
        v_lshlrev_b32 v20, 16, v20
        v_cvt_u32_f32 v20, v20
        v_lshrrev_b32 v21, 8, v20
        v_and_b32 v22, 7, v20
        v_lshrrev_b32 v23, 1, v20
        v_and_b32 v23, 0x7c, v23
        v_lshrrev_b32 v24, 1, v22
        v_add_u32 v24, 8, v24
        v_lshrrev_b32 v25, 2, v22
        v_lshl_add_u32 v25, v21, 1, v25
        v_add_u32 v25, 8, v25
        v_add_u32 v27, 12, v21
        v_cmp_le_u32 vcc, 1, v21
        v_add_u32 v23, s84, v23
        s_nop 0
        v_cndmask_b32 v22, v22, v24, vcc
        v_cmp_le_u32 vcc, 2, v21
        s_nop 1
        v_cndmask_b32 v22, v22, v25, vcc
        v_cmp_le_u32 vcc, 4, v21
        s_nop 1
        v_cndmask_b32 v22, v22, v27, vcc
        v_lshl_add_u32 v{136+e}, v22, 7, v23
        """)
    a(f"""
    v_lshrrev_b32 v20, 5, v2
    v_lshlrev_b32 v20, 3, v20
    v_sub_u32 v20, v20, v34
    v_lshlrev_b32 v20, 1, v20
    v_and_b32 v21, 1, v34
    v_mul_u32_u24 v21, {UR_O - 2}, v21
    v_add_u32 v20, v20, v21
    s_lshl_b32 s21, s17, 5
    s_add_u32 s21, s21, s20
    s_add_u32 s21, s21, {2*(2048 - 16*126)}
    v_add_u32 v152, s21, v20
    v_add_u32 v153, 1024, v152
    v_add_u32 v154, 2048, v152
    v_add_u32 v155, 3072, v152
    v_lshrrev_b32 v20, 5, v2
    v_mul_u32_u24 v20, {96*16}, v20
    v_lshl_add_u32 v20, v34, 4, v20
    s_mul_i32 s21, s17, {2*96*16}
    s_add_u32 s21, s21, s20
    s_add_u32 s21, s21, {KF_OFF - 31*16}
    v_add_u32 v156, s21, v20
    s_lshl_b32 s23, s3, 10
    s_sub_u32 s23, {4096 - 2*448}, s23
    v_lshlrev_b32 v157, 1, v2
    v_sub_u32 v157, s23, v157
    v_lshrrev_b32 v158, 5, v2
    v_lshlrev_b32 v158, 9, v158
    v_lshl_add_u32 v158, v34, 2, v158
    s_lshl_b32 s84, s3, 11
    s_add_u32 s84, s84, {RED}
    v_add_u32 v158, s84, v158
    s_mul_i32 s84, s17, {2*96*16}
    s_add_u32 s84, s84, s20
    s_add_u32 s84, s84, {KF_OFF + 32*16}
    v_add_u32 v159, s84, v3
    """)
    a("s_waitcnt vmcnt(8)")
    stamp(3)
    for g in range(2):
        for r in range(4):
            a(f"ds_write_b32 v158, v{40+4*g+r} offset:{1024*g+128*r}")
    for i in range(8):
        o = 128 * (7 - i)
        a(f"""
        s_waitcnt vmcnt({7-i})
        ds_write_b16 v157, v{128+i} offset:{o}
        ds_write_b16 v157, v{128+i} offset:{o + UR_O - 2}
        ds_write_b16_d16_hi v157, v{128+i} offset:{o + IMG_STRIDE}
        ds_write_b16_d16_hi v157, v{128+i} offset:{o + IMG_STRIDE + UR_O - 2}
        """)
    a(f"""
    s_waitcnt lgkmcnt(0)
    s_barrier
    """)
    stamp(4)
    for e in range(16):
        b = 40 + 2 * e
        a(f"ds_read_b32 v{b}, v{136+e}")
    for i in range(32):
        a(f"v_mov_b32 v{160+i}, 0")
    a("s_waitcnt lgkmcnt(0)")
    for uu in range(2):
        for i in range(4):
            e0 = 40 + 16 * uu + 4 * i
            e1 = e0 + 2
            a(f"""
            v_cvt_pk_bf16_f32 v{20+8*uu+i}, v{e0}, v{e1}
            v_lshlrev_b32 v12, 16, v{20+8*uu+i}
            v_and_b32 v13, 0xffff0000, v{20+8*uu+i}
            v_sub_f32 v12, v{e0}, v12
            v_sub_f32 v13, v{e1}, v13
            v_cvt_pk_bf16_f32 v{24+8*uu+i}, v12, v13
            """)
        a(f"""
        ds_write_b128 v159, v[{20+8*uu}:{23+8*uu}] offset:{96*16*uu}
        ds_write_b128 v159, v[{24+8*uu}:{27+8*uu}] offset:{96*16*uu + 4*96*16}
        """)
    a(f"""
    s_waitcnt lgkmcnt(0)
    s_barrier
    """)
    a(f"s_setprio {PR[3]}")
    stamp(1)
    NSET = 3
    SETB = 64
    CACC = 160

    def cv_reads(dl):
        st = SETB + 20 * (dl % NSET)
        off = 64 * (63 - dl)
        base = 152 + off // 1024
        o = (off % 1024) // 4
        a(f"ds_read2_b32 v[{st}:{st+1}], v{base} offset0:{o} offset1:{o+1}")
        a(f"ds_read2_b32 v[{st+2}:{st+3}], v{base} offset0:{o+2} offset1:{o+3}")
        n = 2
        for c in ((1, 0) if dl < 32 else (1,)):
            for hl in range(2):
                r = st + 4 + 8 * c + 4 * hl
                a(f"ds_read_b128 v[{r}:{r+3}], v156 offset:{16*(63-dl) + 512*c + 6144*hl}")
                n += 1
        return n

    cnt = {}
    cnt[0] = cv_reads(0)
    cnt[1] = cv_reads(1)
    for dl in range(64):
        if dl + 2 < 64:
            cnt[dl + 2] = cv_reads(dl + 2)
        pend = sum(cnt[x] for x in (dl + 1, dl + 2) if x < 64)
        a(f"s_waitcnt lgkmcnt({pend})")
        st = SETB + 20 * (dl % NSET)
        for c in ((1, 0) if dl < 32 else (1,)):
            for hl in range(2):
                r = st + 4 + 8 * c + 4 * hl
                acc = CACC + 16 * c
                a(f"v_mfma_f32_32x32x16_bf16 v[{acc}:{acc+15}], v[{st}:{st+3}], v[{r}:{r+3}], v[{acc}:{acc+15}]")
    stamp(2)
    a("""
    s_nop 7
    s_nop 3
    v_and_b32 v4, 31, v2
    """)
    for i in range(32):
        a(f"v_mov_b32 v{64+i}, v{CACC+i}")
    a(f"""
    s_lshl_b32 s21, s3, 12
    s_add_u32 s21, s21, {RED}
    v_add_u32 v5, s21, v3
    s_xor_b32 s21, s3, 1
    s_lshl_b32 s21, s21, 12
    s_add_u32 s21, s21, {RED}
    v_add_u32 v6, s21, v3
    s_nop 7
    s_cmp_eq_u32 s17, 0
    s_cbranch_scc1 k2_cv_sp0
    """)
    for g in range(4):
        a(f"ds_write_b128 v5, v[{64+4*g}:{67+4*g}] offset:{1024*g}")
    a("s_nop 1")
    for i in range(16):
        a(f"v_mov_b32 v{64+i}, v{80+i}")
    a("s_branch k2_cv_join")
    a.label("k2_cv_sp0")
    for g in range(4):
        a(f"ds_write_b128 v5, v[{80+4*g}:{83+4*g}] offset:{1024*g}")
    a.label("k2_cv_join")
    a(f"""
    s_waitcnt lgkmcnt(0)
    s_barrier
    """)
    for g in range(4):
        a(f"ds_read_b128 v[{100+4*g}:{103+4*g}], v6 offset:{1024*g}")
    a(f"""
    v_lshlrev_b32 v5, 6, v4
    v_lshrrev_b32 v7, 5, v2
    v_lshl_add_u32 v5, v7, 3, v5
    s_lshl_b32 s21, s18, 12
    s_lshl_b32 s22, s17, 11
    s_add_u32 s21, s21, s22
    s_add_u32 s21, s21, {YT}
    s_waitcnt lgkmcnt(0)
    """)
    for g in range(4):
        for r in range(4):
            a(f"v_add_f32 v{64+4*g+r}, v{64+4*g+r}, v{100+4*g+r}")
        a(f"""
        v_cvt_pk_bf16_f32 v{120+2*g}, v{64+4*g}, v{65+4*g}
        v_cvt_pk_bf16_f32 v{121+2*g}, v{66+4*g}, v{67+4*g}
        buffer_store_dwordx2 v[{120+2*g}:{121+2*g}], v5, s[80:83], s21 offen offset:{16*g}
        """)
    stamp_flush(1)
    a("s_endpgm")

    a.label("k2_gemm")
    if "gemm1" in SKIP: a("s_endpgm")
    a(f"s_setprio {PR[0]}")
    SREG[0] = 100
    stamp(0)
    a(f"""
    s_sub_u32 s16, s2, {K2_CV}
    s_and_b32 s17, s16, 15
    s_lshr_b32 s18, s16, 4
    s_lshl_b32 s19, s18, 2
    s_add_u32 s19, s19, s3
    s_lshl_b32 s20, s17, 2
    s_add_u32 s21, s20, s3
    s_lshl_b32 s22, s19, 16
    s_add_u32 s22, s22, {WGF}
    s_add_u32 s23, s22, 32768
    s_lshl_b32 s24, s21, 15
    s_add_u32 s24, s24, {XNF}
    s_mul_i32 s25, s3, 3072
    v_add_u32 v4, s25, v3
    v_add_u32 v5, {3*12288}, v4
    v_add_u32 v6, {3*12288}, v3
    """)
    NB = 6

    def dma_parts(k):
        b = k % NB
        return [
            f"""s_add_u32 s26, s25, {b*12288}
            s_mov_b32 m0, s26
            s_add_u32 s26, s26, 1024
            buffer_load_dwordx4 v3, s[80:83], s22 offen lds
            s_add_u32 s22, s22, 1024""",
            f"""s_mov_b32 m0, s26
            s_add_u32 s26, s26, 1024
            buffer_load_dwordx4 v3, s[80:83], s23 offen lds
            s_add_u32 s23, s23, 1024""",
            f"""s_mov_b32 m0, s26
            s_nop 0
            buffer_load_dwordx4 v3, s[80:83], s24 offen lds
            s_add_u32 s24, s24, 1024""",
        ]

    def read_parts(k):
        b = k % NB
        f = 16 + 24 * (k % 2)
        va = 4 if b < 3 else 5
        vb = 3 if b < 3 else 6
        bo = (b % 3) * 12288
        out = [f"ds_read_b128 v[{f}:{f+3}], v{va} offset:{bo}",
               f"ds_read_b128 v[{f+8}:{f+11}], v{vb} offset:{bo + 2048}",
               f"ds_read_b128 v[{f+4}:{f+7}], v{va} offset:{bo + 1024}"]
        for t in range(1, 4):
            out.append(f"ds_read_b128 v[{f+8+4*t}:{f+11+4*t}], v{vb} offset:{bo + 3072*t + 2048}")
        return out

    for k in range(5):
        for p in dma_parts(k):
            a(p)
    ACC = 128
    for i in range(128):
        a(f"v_mov_b32 v{ACC+i}, 0")
    a("""
    s_waitcnt vmcnt(12)
    s_barrier
    """)
    stamp(1)
    for p in read_parts(0):
        a(p)
    for k in range(32):
        n = 3 * max(0, min(k + 4, 31) - (k + 1))
        if k + 1 < 32:
            a(f"s_waitcnt vmcnt({n}) lgkmcnt(0)")
            a("s_barrier")
        else:
            a("s_waitcnt lgkmcnt(0)")
        if k == 16: stamp(2)
        rp = read_parts(k + 1) if k + 1 < 32 else []
        dp = dma_parts(k + 5) if k + 5 < 32 else []
        f = 16 + 24 * (k % 2)
        mf = []
        for t in range(4):
            for gu in range(2):
                acc = ACC + 64 * gu + 16 * t
                mf.append(f"v_mfma_f32_32x32x16_bf16 v[{acc}:{acc+15}], v[{f+4*gu}:{f+4*gu+3}], v[{f+8+4*t}:{f+11+4*t}], v[{acc}:{acc+15}]")
        fill = [rp[0:2], rp[2:4], rp[4:6], dp[0:1], dp[1:2], dp[2:3], [], []]
        for m, fl in zip(mf, fill):
            a(m)
            for x in fl:
                a(x)
    stamp(3)
    a(f"s_setprio {PR[1]}")
    K0 = hx(f2u(-2.0 * 0.7978845608028654 * L2E))
    K1c = hx(f2u(-2.0 * 0.7978845608028654 * 0.044715 * L2E))
    a(f"""
    v_mov_b32 v60, {K0}
    v_mov_b32 v62, {K1c}
    v_mov_b32 v64, 1.0
    s_mul_i32 s28, s20, {112*1024}
    s_lshl_b32 s29, s19, 11
    s_add_u32 s28, s28, s29
    s_add_u32 s28, s28, {HF}
    s_nop 7
    """)
    for t in range(4):
        for half in range(2):
            o = 16 + 4 * ((2 * t + half) % 4)
            blocks = []
            for i in range(4):
                g0 = ACC + 16 * t + 8 * half + 2 * i
                u0 = g0 + 64
                tb = 66 + 8 * i
                A, B, C, D = tb, tb + 2, tb + 4, tb + 6
                blocks.append([
                    f"v_cvt_pk_bf16_f32 v{C}, v{g0}, v{g0+1}",
                    f"v_cvt_pk_bf16_f32 v{D}, v{u0}, v{u0+1}",
                    f"v_lshlrev_b32 v{A}, 16, v{C}",
                    f"v_and_b32 v{A+1}, 0xffff0000, v{C}",
                    f"v_mul_f32 v{B}, v{A}, v{A}",
                    f"v_mul_f32 v{B+1}, v{A+1}, v{A+1}",
                    f"v_fma_f32 v{B}, v{B}, v62, v60",
                    f"v_fma_f32 v{B+1}, v{B+1}, v62, v60",
                    f"v_mul_f32 v{B}, v{B}, v{A}",
                    f"v_mul_f32 v{B+1}, v{B+1}, v{A+1}",
                    f"v_exp_f32 v{B}, v{B}",
                    f"v_exp_f32 v{B+1}, v{B+1}",
                    f"v_lshlrev_b32 v{C}, 16, v{D}",
                    f"v_and_b32 v{C+1}, 0xffff0000, v{D}",
                    f"v_add_f32 v{B}, 1.0, v{B}",
                    f"v_add_f32 v{B+1}, 1.0, v{B+1}",
                    f"v_rcp_f32 v{B}, v{B}",
                    f"v_rcp_f32 v{B+1}, v{B+1}",
                    f"v_mul_f32 v{B}, v{B}, v{A}",
                    f"v_mul_f32 v{B+1}, v{B+1}, v{A+1}",
                    f"v_cvt_pk_bf16_f32 v{B}, v{B}, v{B+1}",
                    f"v_lshlrev_b32 v{A}, 16, v{B}",
                    f"v_and_b32 v{A+1}, 0xffff0000, v{B}",
                    f"v_mul_f32 v{A}, v{A}, v{C}",
                    f"v_mul_f32 v{A+1}, v{A+1}, v{C+1}",
                    f"v_cvt_pk_bf16_f32 v{o+i}, v{A}, v{A+1}",
                ])
            for j in range(len(blocks[0])):
                for bl in blocks:
                    a(bl[j])
            a(f"buffer_store_dwordx4 v[{o}:{o+3}], v3, s[80:83], s28 offen offset:{1024*half}")
        a(f"s_add_u32 s28, s28, {112*1024}")
    stamp_flush(1)
    a("s_endpgm")
    a.label("k2_shd")
    a(f"""
    s_load_dwordx2 s[4:5], s[0:1], 80
    s_sub_u32 s16, s2, {K2_CV + K2_G1}
    s_lshl_b32 s16, s16, 2
    s_add_u32 s16, s16, s3
    s_lshr_b32 s17, s16, 4
    s_and_b32 s18, s16, 15
    v_lshrrev_b32 v5, 5, v2
    v_lshlrev_b32 v5, 12, v5
    v_and_b32 v4, 31, v2
    v_lshl_add_u32 v5, v4, 1, v5
    s_lshl_b32 s20, s18, 6
    v_add_u32 v5, s20, v5
    s_mul_i32 s20, s17, {14*16*1024}
    s_mul_i32 s22, s18, {112*1024}
    s_mul_i32 s21, s17, {14*1024}
    s_add_u32 s22, s22, s21
    s_add_u32 s22, s22, {WDF}
    s_waitcnt lgkmcnt(0)
    s_mov_b32 s84, s4
    s_and_b32 s85, s5, 0xffff
    s_mov_b32 s86, {512*1792*2}
    s_mov_b32 s87, 0x00020000
    """)
    for half in range(2):
        for fr in range(7):
            for e in range(8):
                f = 16 * (7 * half + fr) + 8 * (e >> 2) + (e & 3)
                a(f"""
                s_add_u32 s21, s20, {f*1024}
                buffer_load_ushort v{10+8*fr+e}, v5, s[84:87], s21 offen
                """)
        for fr in range(7):
            a(f"s_waitcnt vmcnt({48-8*fr + fr})")
            for i in range(4):
                a(f"v_lshl_or_b32 v{70+4*fr+i}, v{10+8*fr+2*i+1}, 16, v{10+8*fr+2*i}")
            a(f"""
            s_add_u32 s21, s22, {(7*half+fr)*1024}
            buffer_store_dwordx4 v[{70+4*fr}:{73+4*fr}], v3, s[80:83], s21 offen
            """)
        if half == 0:
            a("s_waitcnt vmcnt(0)")
    a.label("k2_end")
    a("s_endpgm")


K3_TOTAL = 256
K3_LDS = 131072


def gen_k3():
    a.raw(".text")
    a.raw(".globl k3_kernel")
    a.raw(".p2align 8")
    a.raw(".type k3_kernel,@function")
    a.label("k3_kernel")
    a(f"""
    s_cmp_ge_u32 s2, {K3_TOTAL}
    s_cbranch_scc1 k3_end
    s_load_dwordx2 s[14:15], s[0:1], 104
    s_load_dwordx2 s[4:5], s[0:1], 0
    s_load_dwordx2 s[6:7], s[0:1], 48
    s_load_dwordx2 s[8:9], s[0:1], 88
    v_lshrrev_b32 v1, 6, v0
    v_and_b32 v2, 63, v0
    v_readfirstlane_b32 s3, v1
    v_lshlrev_b32 v3, 4, v2
    s_lshr_b32 s18, s2, 3
    s_and_b32 s16, s18, 7
    s_lshr_b32 s18, s18, 3
    s_and_b32 s17, s2, 7
    s_lshl_b32 s17, s17, 2
    s_add_u32 s17, s17, s18
    s_waitcnt lgkmcnt(0)
    """)
    ws_srd(80)
    a(f"""
    s_and_b32 s19, s3, 1
    s_lshl_b32 s20, s16, 1
    s_add_u32 s20, s20, s19
    s_mul_i32 s20, s20, {112*1024}
    s_add_u32 s20, s20, {WDF}
    s_lshl_b32 s21, s17, 1
    s_add_u32 s21, s21, s19
    s_mul_i32 s21, s21, {112*1024}
    s_add_u32 s21, s21, {HF}
    s_cmp_lt_u32 s3, 2
    s_cselect_b32 s20, s20, s21
    s_lshl_b32 s25, s3, 12
    """)
    SREG[0] = 90
    stamp(0)
    NBUF = 8
    NST = 28

    def dma(st):
        b = st % NBUF
        return [f"""
        s_add_u32 s26, s25, {b*16384}
        s_mov_b32 m0, s26
        s_nop 0
        buffer_load_dwordx4 v3, s[80:83], s20 offen lds
        buffer_load_dwordx4 v3, s[80:83], s20 offen offset:1024 lds
        """, f"""
        buffer_load_dwordx4 v3, s[80:83], s20 offen offset:2048 lds
        buffer_load_dwordx4 v3, s[80:83], s20 offen offset:3072 lds
        s_add_u32 s20, s20, 4096
        """]

    for st in range(NBUF - 1):
        for p in dma(st):
            a(p)
    a(f"""
    s_mov_b32 s84, s4
    s_and_b32 s85, s5, 0xffff
    s_mov_b32 s86, 0x200000
    s_mov_b32 s87, 0x00020000
    s_mov_b32 s88, s6
    s_and_b32 s89, s7, 0xffff
    s_mov_b32 s90, 1024
    s_mov_b32 s91, 0x00020000
    s_mov_b32 s92, s8
    s_and_b32 s93, s9, 0xffff
    s_mov_b32 s94, 0x200000
    s_mov_b32 s95, 0x00020000
    """)
    a(f"""
    s_lshr_b32 s24, s3, 1
    s_and_b32 s22, s3, 1
    s_lshl_b32 s26, s16, 1
    s_add_u32 s26, s26, s24
    s_lshl_b32 s27, s17, 1
    s_add_u32 s27, s27, s22
    v_and_b32 v4, 31, v2
    v_lshrrev_b32 v5, 5, v2
    v_lshlrev_b32 v6, 10, v4
    v_lshl_add_u32 v6, v5, 3, v6
    s_lshl_b32 s28, s27, 15
    s_lshl_b32 s29, s26, 6
    s_add_u32 s28, s28, s29
    v_lshlrev_b32 v7, 4, v4
    v_lshl_add_u32 v7, v5, 3, v7
    s_lshl_b32 s30, s27, 15
    s_lshl_b32 s31, s26, 11
    s_add_u32 s30, s30, s31
    s_add_u32 s30, s30, {XNF}
    v_lshlrev_b32 v8, 3, v5
    v_lshlrev_b32 v9, 14, v5
    v_lshl_add_u32 v9, v4, 1, v9
    s_lshl_b32 s32, s26, 17
    s_lshl_b32 s33, s27, 6
    s_add_u32 s32, s32, s33
    s_add_u32 s32, s32, {YT}
    s_lshl_b32 s24, s24, 12
    s_lshl_b32 s22, s22, 12
    s_add_u32 s22, s22, 8192
    v_add_u32 v50, s24, v3
    v_add_u32 v51, s22, v3
    v_add_u32 v52, 65536, v50
    v_add_u32 v53, 65536, v51
    """)
    ACC = 96
    for i in range(16):
        a(f"v_mov_b32 v{ACC+i}, 0")

    def reads(st):
        b = st % NBUF
        f = 112 + 32 * (st % 2)
        va, vb = (50, 51) if b < 4 else (52, 53)
        bo = (b % 4) * 16384
        out = []
        for k in range(4):
            out.append(f"ds_read_b128 v[{f+8*k}:{f+8*k+3}], v{va} offset:{bo + 1024*k}")
            out.append(f"ds_read_b128 v[{f+8*k+4}:{f+8*k+7}], v{vb} offset:{bo + 1024*k}")
        return out

    a(f"""
    s_waitcnt vmcnt({4*(NBUF-2)})
    s_barrier
    """)
    stamp(1)
    for r in reads(0):
        a(r)
    EPI_AT = 20
    for st in range(NST):
        issued = min(st + NBUF - 2, NST - 1)
        n = 4 * max(0, issued - (st + 1))
        if st > EPI_AT:
            n += 28 if issued <= EPI_AT + NBUF - 1 else 0
        if st + 1 < NST:
            a(f"s_waitcnt vmcnt({min(n,63)}) lgkmcnt(0)")
            a("s_barrier")
        else:
            a("s_waitcnt lgkmcnt(0)")
        if st == 14: stamp(2)
        rp = reads(st + 1) if st + 1 < NST else []
        dp = dma(st + NBUF - 1) if st + NBUF - 1 < NST else []
        f = 112 + 32 * (st % 2)
        fill = [rp[0:4], rp[4:8], dp[0:1], dp[1:2]]
        for k in range(4):
            a(f"v_mfma_f32_32x32x16_bf16 v[{ACC}:{ACC+15}], v[{f+8*k}:{f+8*k+3}], v[{f+8*k+4}:{f+8*k+7}], v[{ACC}:{ACC+15}]")
            for x in fill[k]:
                a(x)
        if st == EPI_AT:
            for g in range(4):
                a(f"buffer_load_dwordx2 v[{10+2*g}:{11+2*g}], v6, s[84:87], s28 offen offset:{16*g}")
                a(f"buffer_load_dwordx2 v[{18+2*g}:{19+2*g}], v7, s[80:83], s30 offen offset:{(g>>1)*1024 + (g&1)*512}")
                a(f"buffer_load_dwordx2 v[{26+2*g}:{27+2*g}], v8, s[88:91], s29 offen offset:{16*g}")
            for g in range(4):
                for r in range(4):
                    if r == 0:
                        a(f"s_add_u32 s33, s32, {8*g*4096}")
                    else:
                        a(f"s_add_u32 s33, s33, 4096")
                    a(f"buffer_load_ushort v{34+4*g+r}, v9, s[80:83], s33 offen")
    stamp(3)
    a(f"""
    s_mov_b32 s34, {hx(L2E_HI | 0x80000000)}
    s_waitcnt vmcnt(0)
    s_nop 7
    """)
    stamp(4)
    for g in range(4):
        for p in range(2):
            c0 = ACC + 4 * g + 2 * p
            xr = 10 + 2 * g + p
            nr = 18 + 2 * g + p
            dr = 26 + 2 * g + p
            y0 = 34 + 4 * g + 2 * p
            a(f"""
            v_cvt_pk_bf16_f32 v52, v{c0}, v{c0+1}
            v_lshlrev_b32 v53, 16, v52
            v_and_b32 v54, 0xffff0000, v52
            v_mul_f32 v55, s34, v53
            v_mul_f32 v56, s34, v54
            v_exp_f32 v55, v55
            v_exp_f32 v56, v56
            v_lshlrev_b32 v57, 16, v{nr}
            v_and_b32 v58, 0xffff0000, v{nr}
            v_lshlrev_b32 v59, 16, v{dr}
            v_and_b32 v60, 0xffff0000, v{dr}
            v_add_f32 v55, 1.0, v55
            v_add_f32 v56, 1.0, v56
            v_rcp_f32 v55, v55
            v_rcp_f32 v56, v56
            v_mul_f32 v57, v57, v59
            v_mul_f32 v58, v58, v60
            v_mul_f32 v55, v55, v53
            v_mul_f32 v56, v56, v54
            v_cvt_pk_bf16_f32 v57, v57, v58
            v_cvt_pk_bf16_f32 v55, v55, v56
            v_lshlrev_b32 v59, 16, v{y0}
            v_lshlrev_b32 v60, 16, v{y0+1}
            v_and_b32 v58, 0xffff0000, v57
            v_lshlrev_b32 v57, 16, v57
            v_add_f32 v57, v57, v59
            v_add_f32 v58, v58, v60
            v_cvt_pk_bf16_f32 v57, v57, v58
            v_and_b32 v56, 0xffff0000, v55
            v_lshlrev_b32 v55, 16, v55
            v_and_b32 v58, 0xffff0000, v57
            v_lshlrev_b32 v57, 16, v57
            v_mul_f32 v57, v57, v55
            v_mul_f32 v58, v58, v56
            v_cvt_pk_bf16_f32 v57, v57, v58
            v_lshlrev_b32 v59, 16, v{xr}
            v_and_b32 v60, 0xffff0000, v{xr}
            v_and_b32 v58, 0xffff0000, v57
            v_lshlrev_b32 v57, 16, v57
            v_add_f32 v57, v57, v59
            v_add_f32 v58, v58, v60
            v_cvt_pk_bf16_f32 v{64+2*g+p}, v57, v58
            """)
        a(f"buffer_store_dwordx2 v[{64+2*g}:{65+2*g}], v6, s[92:95], s28 offen offset:{16*g}")
    stamp_flush(2)
    a.label("k3_end")
    a("s_endpgm")


def descriptor(name, vgpr):
    a.raw(f""".amdhsa_kernel {name}
  .amdhsa_next_free_vgpr {vgpr}
  .amdhsa_next_free_sgpr 102
  .amdhsa_accum_offset {((vgpr+3)//4)*4}
  .amdhsa_group_segment_fixed_size 0
  .amdhsa_kernarg_size 112
  .amdhsa_user_sgpr_count 2
  .amdhsa_user_sgpr_kernarg_segment_ptr 1
  .amdhsa_system_sgpr_workgroup_id_x 1
.end_amdhsa_kernel""")


def main():
    hdr = open(f"cdna_kernels/{NAME}.s.ref").read().split("\n")
    keep = []
    for ln in hdr:
        if not ln.startswith(";"):
            break
        if "@launch" in ln or "Override launch" in ln or "grid=ceil" in ln:
            continue
        keep.append(ln)
    out = "\n".join(keep) + "\n"
    out += f"; @launch kernel=k1_kernel grid=({K1_TOTAL},1,1) block=(256,1,1) lds=20480\n"
    out += f"; @launch kernel=k2_kernel grid=({K2_TOTAL},1,1) block=(256,1,1) lds={K2_LDS}\n"
    out += f"; @launch kernel=k3_kernel grid=({K3_TOTAL},1,1) block=(256,1,1) lds={K3_LDS}\n"
    out += '.amdgcn_target "amdgcn-amd-amdhsa--gfx950"\n'
    gen_k1()
    gen_k2()
    gen_k3()
    a.raw('.section .rodata,"a"')
    a.raw(".p2align 6")
    descriptor("k1_kernel", 128)
    a.raw(".p2align 6")
    descriptor("k2_kernel", 256)
    a.raw(".p2align 6")
    descriptor("k3_kernel", 176)
    out += a.text()
    path = sys.argv[1] if len(sys.argv) > 1 else f"cdna_kernels/{NAME}.s"
    open(path, "w").write(out)
    print("wrote", path, len(out), "bytes")


main()
```

```python
import struct, sys
import numpy as np

NAME = "recurrent_scan__ssm_conv_s4d__geglu_ffn__prompt"


def f2u(x):
    return struct.unpack("<I", struct.pack("<f", np.float32(x)))[0]


def hx(x):
    return "0x%08x" % (x & 0xFFFFFFFF)


L2E = 1.4426950408889634
L2E_HI = f2u(L2E)
L2E_LO = f2u(L2E - float(np.float32(L2E)))
I2P = 0.15915494309189535
I2P_HI = f2u(I2P)
I2P_LO = f2u(I2P - float(np.float32(I2P)))
LN2 = f2u(0.6931471805599453)

XNF = 0x0
IMG = 0x200000
IMG_STRIDE = 21504
UR_O = 4160
KF_OFF = 9216
KT = 0x200000
WGF = 0xC80000
WDF = 0x1000000
HF = 0x1200000
YT = 0x1900000
WS_SIZE = 0x1B00000


class Asm:
    def __init__(self):
        self.lines = []

    def __call__(self, s):
        for ln in s.strip("\n").split("\n"):
            ln = ln.strip()
            if ln:
                self.lines.append("    " + ln)

    def label(self, l):
        self.lines.append(l + ":")

    def raw(self, s):
        self.lines.append(s)

    def text(self):
        return "\n".join(self.lines) + "\n"


a = Asm()
import os
SKIP = os.environ.get("SKIP", "").split(",")
PR = [int(c) for c in os.environ.get("PR", "2031")]
STAMPS = os.environ.get("STAMPS", "") != ""
STAMP_BASE = 0x1B00000
if STAMPS:
    WS_SIZE = 0x1C00000
SREG = [170]


def stamp(i):
    if not STAMPS:
        return
    a(f"""
    s_memtime s[100:101]
    s_waitcnt lgkmcnt(0)
    v_writelane_b32 v{SREG[0]}, s100, {i}
    """)
    if i == 0:
        a(f"""
        s_memrealtime s[100:101]
        s_waitcnt lgkmcnt(0)
        v_writelane_b32 v{SREG[0]}, s100, 5
        """)


def stamp_flush(kid):
    if not STAMPS:
        return
    a(f"""
    s_memtime s[100:101]
    s_waitcnt lgkmcnt(0)
    v_writelane_b32 v{SREG[0]}, s100, 7
    s_memrealtime s[100:101]
    s_waitcnt lgkmcnt(0)
    v_writelane_b32 v{SREG[0]}, s100, 6
    s_lshl_b32 s100, s2, 3
    s_add_u32 s100, s100, s3
    s_lshl_b32 s100, s100, 5
    s_add_u32 s100, s100, {STAMP_BASE + kid*0x40000}
    v_lshlrev_b32 v{SREG[0]+1}, 2, v2
    v_cmp_gt_u32 vcc, 8, v2
    s_and_saveexec_b64 s[98:99], vcc
    buffer_store_dword v{SREG[0]}, v{SREG[0]+1}, s[80:83], s100 offen
    s_mov_b64 exec, s[98:99]
    """)

K1_KG = 512
K1_LN = 64
K1_SG = 224
K1_SD = 0
K1_TOTAL = K1_KG + K1_LN + K1_SG + K1_SD


def ws_srd(dst, base_lo=14, base_hi=15):
    a(f"""
    s_mov_b32 s{dst}, s{base_lo}
    s_and_b32 s{dst+1}, s{base_hi}, 0xffff
    s_mov_b32 s{dst+2}, {hx(WS_SIZE)}
    s_mov_b32 s{dst+3}, 0x00020000
    """)


def gen_k1():
    a.raw(".text")
    a.raw(".globl k1_kernel")
    a.raw(".p2align 8")
    a.raw(".type k1_kernel,@function")
    a.label("k1_kernel")
    a(f"""
    s_cmp_ge_u32 s2, {K1_TOTAL}
    s_cbranch_scc1 k1_end
    s_load_dwordx2 s[14:15], s[0:1], 104
    v_lshrrev_b32 v1, 6, v0
    v_and_b32 v2, 63, v0
    v_readfirstlane_b32 s3, v1
    s_cmp_lt_u32 s2, {K1_LN}
    s_cbranch_scc1 k1_ln
    s_cmp_lt_u32 s2, {K1_KG + K1_LN}
    s_cbranch_scc1 k1_kgen
    s_branch k1_shg
    """)
    a.label("k1_kgen")
    if "kgen" in SKIP: a("s_endpgm")
    a("s_mov_b32 s97, s2")
    a(f"s_sub_u32 s2, s2, {K1_LN}")
    SREG[0] = 38
    stamp(0)
    a(f"""
    s_load_dwordx8 s[4:11], s[0:1], 8
    s_load_dwordx2 s[12:13], s[0:1], 40
    v_and_b32 v3, 31, v2
    s_lshl_b32 s84, s2, 8
    s_lshl_b32 s85, s3, 6
    s_add_u32 s84, s84, s85
    v_lshlrev_b32 v9, 1, v3
    v_add_u32 v9, s84, v9
    s_waitcnt lgkmcnt(0)
    """)
    ws_srd(80)
    for i in range(4):
        a(f"""
        s_mov_b32 s{16+4*i}, s{4+2*i}
        s_and_b32 s{17+4*i}, s{5+2*i}, 0xffff
        s_mov_b32 s{18+4*i}, 131072
        s_mov_b32 s{19+4*i}, 0x00020000
        """)
    a(f"""
    s_lshr_b32 s85, s2, 1
    s_lshl_b32 s85, s85, 2
    s_add_u32 s12, s12, s85
    s_addc_u32 s13, s13, 0
    s_load_dword s86, s[12:13], 0
    buffer_load_ushort v10, v9, s[16:19], 0 offen
    buffer_load_ushort v11, v9, s[20:23], 0 offen
    buffer_load_ushort v12, v9, s[24:27], 0 offen
    buffer_load_ushort v13, v9, s[28:31], 0 offen
    s_mov_b32 s88, {hx(L2E_HI)}
    s_mov_b32 s89, {hx(L2E_LO)}
    s_mov_b32 s90, {hx(I2P_HI)}
    s_mov_b32 s91, {hx(I2P_LO)}
    v_lshlrev_b32 v20, 1, v3
    v_add_u32 v20, 240, v20
    v_subrev_u32 v21, 12, v3
    v_lshrrev_b32 v22, 1, v21
    v_lshlrev_b32 v22, 8, v22
    v_and_b32 v21, 1, v21
    v_lshlrev_b32 v21, 2, v21
    v_add_u32 v21, v21, v22
    v_add_u32 v21, 512, v21
    v_subrev_u32 v22, 12, v3
    v_lshlrev_b32 v22, 8, v22
    v_mov_b32 v23, 0
    v_mov_b32 v5, v3
    v_cmp_le_u32 vcc, 8, v3
    s_nop 1
    v_cndmask_b32 v5, v5, v20, vcc
    v_cmp_le_u32 vcc, 12, v3
    s_nop 1
    v_cndmask_b32 v5, v5, v21, vcc
    v_cmp_le_u32 vcc, 16, v3
    s_nop 1
    v_cndmask_b32 v5, v5, v22, vcc
    v_cmp_le_u32 vcc, 21, v3
    s_nop 1
    v_cndmask_b32 v5, v5, v23, vcc
    v_cvt_f32_u32 v5, v5
    v_lshlrev_b32 v6, 3, v3
    v_cvt_f32_u32 v6, v6
    s_mul_i32 s87, s3, 640
    s_add_u32 s87, s87, 16384
    v_lshlrev_b32 v4, 2, v3
    v_add_u32 v4, s87, v4
    v_lshrrev_b32 v9, 5, v2
    v_lshlrev_b32 v9, 4, v9
    v_add_u32 v9, s87, v9
    """)
    for i in range(16):
        a(f"v_mov_b32 v{80+i}, 0")
    a(f"""
    s_waitcnt lgkmcnt(0)
    s_lshr_b32 s87, s86, 16
    s_and_b32 s86, s86, 0xffff
    s_bitcmp1_b32 s2, 0
    s_cselect_b32 s86, s87, s86
    s_lshl_b32 s86, s86, 16
    v_mov_b32 v24, s86
    v_mul_f32 v14, s88, v24
    v_fma_f32 v15, v24, s88, -v14
    v_fma_f32 v15, v24, s89, v15
    v_exp_f32 v16, v14
    v_mul_f32 v15, {hx(LN2)}, v15
    s_nop 0
    v_fma_f32 v16, v16, v15, v16
    v_cvt_pk_bf16_f32 v16, v16, v16
    v_lshlrev_b32 v7, 16, v16
    v_add_f32 v8, v7, v7
    s_waitcnt vmcnt(0)
    v_lshlrev_b32 v10, 16, v10
    v_lshlrev_b32 v11, 16, v11
    v_lshlrev_b32 v12, 16, v12
    v_lshlrev_b32 v13, 16, v13
    v_mul_f32 v14, s88, v10
    v_fma_f32 v15, v10, s88, -v14
    v_fma_f32 v15, v10, s89, v15
    v_exp_f32 v16, v14
    v_mul_f32 v15, {hx(LN2)}, v15
    v_mul_f32 v11, v11, v7
    v_fma_f32 v16, v16, v15, v16
    v_mul_f32 v18, s90, v11
    v_cvt_pk_bf16_f32 v16, v16, v16
    v_fma_f32 v19, v11, s90, -v18
    v_lshlrev_b32 v16, 16, v16
    v_fma_f32 v19, v11, s91, v19
    v_mul_f32 v16, v16, v7
    v_mul_f32 v20, v12, v8
    v_mul_f32 v21, v13, v8
    v_mul_f32 v17, {hx(L2E_HI | 0x80000000)}, v16
    ds_write_b32 v4, v18 offset:128
    ds_write_b32 v4, v19 offset:256
    ds_write_b32 v4, v20 offset:384
    ds_write_b32 v4, v21 offset:512
    ds_write_b32 v4, v17 offset:0
    s_waitcnt lgkmcnt(0)
    """)
    stamp(1)

    def kg_read(g):
        pb = 40 + 20 * (g % 2)
        for p in range(5):
            a(f"ds_read_b128 v[{pb+4*p}:{pb+4*p+3}], v9 offset:{128*p + 32*g}")

    kg_read(0)
    for g in range(4):
        if g + 1 < 4:
            kg_read(g + 1)
            a("s_waitcnt lgkmcnt(5)")
        else:
            a("s_waitcnt lgkmcnt(0)")
        pb = 40 + 20 * (g % 2)
        for pair in range(2):
            stages = [[] for _ in range(16)]
            for m in range(2):
                i = 2 * pair + m
                ard2, whi, wlo, cr2, ci2 = (pb + 4 * p + i for p in range(5))
                t = 10 + 12 * m
                rA, rlA, eA, sA, cA, t1, t2, rB, rlB, eB, sB, cB = range(t, t + 12)
                Gr, nGi, Fr, Fi = 96 + 2 * i, 97 + 2 * i, 104 + 2 * i, 105 + 2 * i
                seq = [
                    [f"v_mul_f32 v{rA}, v{whi}, v5", f"v_mul_f32 v{rB}, v{whi}, v6"],
                    [f"v_mul_f32 v{eA}, v{ard2}, v5", f"v_mul_f32 v{eB}, v{ard2}, v6"],
                    [f"v_fma_f32 v{rlA}, v{whi}, v5, -v{rA}", f"v_fma_f32 v{rlB}, v{whi}, v6, -v{rB}"],
                    [f"v_exp_f32 v{eA}, v{eA}", f"v_exp_f32 v{eB}, v{eB}"],
                    [f"v_fma_f32 v{rlA}, v{wlo}, v5, v{rlA}", f"v_fma_f32 v{rlB}, v{wlo}, v6, v{rlB}"],
                    [f"v_fract_f32 v{rA}, v{rA}", f"v_fract_f32 v{rB}, v{rB}"],
                    [f"v_add_f32 v{rA}, v{rA}, v{rlA}", f"v_add_f32 v{rB}, v{rB}, v{rlB}"],
                    [f"v_sin_f32 v{sA}, v{rA}", f"v_cos_f32 v{cA}, v{rA}"],
                    [f"v_sin_f32 v{sB}, v{rB}", f"v_cos_f32 v{cB}, v{rB}"],
                    [f"v_mul_f32 v{t1}, v{ci2}, v{sA}", f"v_mul_f32 v{t2}, v{ci2}, v{cA}"],
                    [f"v_fma_f32 v{t1}, v{cr2}, v{cA}, -v{t1}", f"v_fma_f32 v{t2}, v{cr2}, v{sA}, v{t2}"],
                    [f"v_mul_f32 v{Fr}, v{eB}, v{cB}", f"v_mul_f32 v{Fi}, v{eB}, v{sB}"],
                    [f"v_mul_f32 v{Gr}, v{eA}, v{t1}", f"v_mul_f32_e64 v{nGi}, -v{eA}, v{t2}"],
                    [f"v_cvt_pk_bf16_f32 v{120+i}, v{Fr}, v{Fi}", f"v_cvt_pk_bf16_f32 v{112+i}, v{Gr}, v{nGi}"],
                    [f"v_lshlrev_b32 v{rA}, 16, v{120+i}", f"v_and_b32 v{rlA}, 0xffff0000, v{120+i}",
                     f"v_lshlrev_b32 v{rB}, 16, v{112+i}", f"v_and_b32 v{rlB}, 0xffff0000, v{112+i}"],
                    [f"v_sub_f32 v{Fr}, v{Fr}, v{rA}", f"v_sub_f32 v{Fi}, v{Fi}, v{rlA}",
                     f"v_sub_f32 v{Gr}, v{Gr}, v{rB}", f"v_sub_f32 v{nGi}, v{nGi}, v{rlB}",
                     f"v_cvt_pk_bf16_f32 v{124+i}, v{Fr}, v{Fi}", f"v_cvt_pk_bf16_f32 v{116+i}, v{Gr}, v{nGi}"],
                ]
                for k, st in enumerate(seq):
                    stages[k] += st
            for st in stages:
                for ins in st:
                    a(ins)
        a(f"""
        s_nop 1
        v_mfma_f32_32x32x16_bf16 v[80:95], v[112:115], v[120:123], v[80:95]
        v_mfma_f32_32x32x16_bf16 v[80:95], v[112:115], v[124:127], v[80:95]
        v_mfma_f32_32x32x16_bf16 v[80:95], v[116:119], v[120:123], v[80:95]
        """)
    stamp(2)
    a(f"""
    s_lshl_b32 s84, s3, 12
    v_lshlrev_b32 v10, 4, v2
    v_add_u32 v11, s84, v10
    s_lshl_b32 s84, s3, 10
    v_add_u32 v12, s84, v10
    s_lshl_b32 s85, s2, 12
    s_add_u32 s85, s85, s84
    s_add_u32 s85, s85, {KT}
    s_nop 10
    """)
    for g in range(3):
        a(f"ds_write_b128 v11, v[{80+4*g}:{83+4*g}] offset:{1024*g}")
    a(f"""
    s_waitcnt lgkmcnt(0)
    s_barrier
    s_cmp_eq_u32 s3, 3
    s_cbranch_scc1 k1_end
    """)
    stamp(3)
    for w in range(4):
        a(f"ds_read_b128 v[{40+4*w}:{43+4*w}], v12 offset:{4096*w}")
    a("s_waitcnt lgkmcnt(0)")
    for r in range(4):
        a(f"""
        v_add_f32 v{40+r}, v{40+r}, v{44+r}
        v_add_f32 v{48+r}, v{48+r}, v{52+r}
        """)
    for r in range(4):
        a(f"v_add_f32 v{40+r}, v{40+r}, v{48+r}")
    a("buffer_store_dwordx4 v[40:43], v10, s[80:83], s85 offen")
    a("s_mov_b32 s2, s97")
    stamp_flush(0)
    a("s_endpgm")

    a.label("k1_ln")
    if "ln" in SKIP: a("s_endpgm")
    SREG[0] = 126
    stamp(0)
    a(f"""
    s_load_dwordx2 s[4:5], s[0:1], 0
    s_setprio 3
    s_mov_b32 s16, s2
    s_lshl_b32 s16, s16, 2
    s_add_u32 s16, s16, s3
    s_lshl_b32 s17, s16, 3
    s_lshl_b32 s18, s17, 10
    v_lshlrev_b32 v3, 4, v2
    s_waitcnt lgkmcnt(0)
    """)
    ws_srd(80)
    a(f"""
    s_mov_b32 s84, s4
    s_and_b32 s85, s5, 0xffff
    s_mov_b32 s86, 0x200000
    s_mov_b32 s87, 0x00020000
    """)
    for r in range(8):
        if r == 4:
            a("s_add_u32 s18, s18, 4096")
        a(f"buffer_load_dwordx4 v[{8+4*r}:{11+4*r}], v3, s[84:87], s18 offen offset:{(r%4)*1024}")

    def val(r, k):
        return 40 + 8 * r + k

    SUM = 104
    for r in range(8):
        a(f"s_waitcnt vmcnt({7-r})")
        for i in range(4):
            a(f"""
            v_lshlrev_b32 v{val(r,2*i)}, 16, v{8+4*r+i}
            v_and_b32 v{val(r,2*i+1)}, 0xffff0000, v{8+4*r+i}
            """)
        a(f"""
        v_pk_add_f32 v[4:5], v[{val(r,0)}:{val(r,1)}], v[{val(r,2)}:{val(r,3)}]
        v_pk_add_f32 v[6:7], v[{val(r,4)}:{val(r,5)}], v[{val(r,6)}:{val(r,7)}]
        v_pk_add_f32 v[4:5], v[4:5], v[6:7]
        v_add_f32 v{SUM+r}, v4, v5
        """)

    def dpp_reduce(base):
        for mod in ["row_shr:1 row_mask:0xf bank_mask:0xf bound_ctrl:0",
                    "row_shr:2 row_mask:0xf bank_mask:0xf bound_ctrl:0",
                    "row_shr:4 row_mask:0xf bank_mask:0xf bound_ctrl:0",
                    "row_shr:8 row_mask:0xf bank_mask:0xf bound_ctrl:0",
                    "row_bcast:15 row_mask:0xa bank_mask:0xf",
                    "row_bcast:31 row_mask:0xc bank_mask:0xf"]:
            for r in range(8):
                a(f"v_add_f32_dpp v{base+r}, v{base+r}, v{base+r} {mod}")

    stamp(1)
    a("s_nop 1")
    dpp_reduce(SUM)
    a("s_nop 1")
    for r in range(8):
        a(f"v_readlane_b32 s{20+r}, v{SUM+r}, 63")
    a("s_nop 1")
    inv512 = hx(f2u(1.0 / 512))
    for r in range(8):
        a(f"""
        v_mov_b32 v{8+4*r}, s{20+r}
        v_mul_f32 v{8+4*r}, {inv512}, v{8+4*r}
        """)
    for r in range(8):
        mu = 8 + 4 * r
        a(f"""
        v_pk_add_f32 v[4:5], v[{val(r,0)}:{val(r,1)}], v[{mu}:{mu+1}] op_sel_hi:[1,0] neg_lo:[0,1] neg_hi:[0,1]
        v_pk_add_f32 v[6:7], v[{val(r,2)}:{val(r,3)}], v[{mu}:{mu+1}] op_sel_hi:[1,0] neg_lo:[0,1] neg_hi:[0,1]
        v_pk_mul_f32 v[112:113], v[4:5], v[4:5]
        v_pk_mul_f32 v[114:115], v[6:7], v[6:7]
        v_pk_add_f32 v[4:5], v[{val(r,4)}:{val(r,5)}], v[{mu}:{mu+1}] op_sel_hi:[1,0] neg_lo:[0,1] neg_hi:[0,1]
        v_pk_add_f32 v[6:7], v[{val(r,6)}:{val(r,7)}], v[{mu}:{mu+1}] op_sel_hi:[1,0] neg_lo:[0,1] neg_hi:[0,1]
        v_pk_fma_f32 v[112:113], v[4:5], v[4:5], v[112:113]
        v_pk_fma_f32 v[114:115], v[6:7], v[6:7], v[114:115]
        v_pk_add_f32 v[112:113], v[112:113], v[114:115]
        v_add_f32 v{SUM+r}, v112, v113
        """)
    a("s_nop 1")
    dpp_reduce(SUM)
    a("s_nop 1")
    for r in range(8):
        a(f"v_readlane_b32 s{32+r}, v{SUM+r}, 63")
    a("s_nop 1")
    eps = hx(f2u(1e-5))
    RCP = [112, 114, 116, 118, 120, 122, 124, 6]
    for r in range(8):
        a(f"""
        v_mov_b32 v4, s{32+r}
        v_mul_f32 v4, {inv512}, v4
        v_cvt_pk_bf16_f32 v4, v4, v{8+4*r}
        v_and_b32 v{8+4*r}, 0xffff0000, v4
        v_lshlrev_b32 v4, 16, v4
        v_add_f32 v4, {eps}, v4
        v_cvt_pk_bf16_f32 v4, v4, v4
        v_lshlrev_b32 v4, 16, v4
        v_sqrt_f32 v4, v4
        s_nop 0
        v_cvt_pk_bf16_f32 v4, v4, v4
        v_lshlrev_b32 v{10+4*r}, 16, v4
        v_rcp_f32 v{RCP[r]}, v{10+4*r}
        """)
    stamp(2)
    a(f"""
    v_lshrrev_b32 v3, 1, v2
    v_lshlrev_b32 v3, 10, v3
    v_and_b32 v4, 1, v2
    v_lshl_add_u32 v3, v4, 9, v3
    s_lshr_b32 s19, s17, 5
    s_lshl_b32 s19, s19, 15
    s_and_b32 s18, s17, 31
    s_lshl_b32 s18, s18, 4
    s_add_u32 s18, s18, s19
    """)
    for r in range(8):
        mb, den, rc = 8 + 4 * r, 10 + 4 * r, RCP[r]
        o = 104 + 4 * (r % 2)
        for k in range(0, 8, 2):
            x0 = val(r, k)
            a(f"""
            v_pk_add_f32 v[4:5], v[{x0}:{x0+1}], v[{mb}:{mb+1}] op_sel_hi:[1,0] neg_lo:[0,1] neg_hi:[0,1]
            v_cvt_pk_bf16_f32 v4, v4, v5
            v_and_b32 v5, 0xffff0000, v4
            v_lshlrev_b32 v4, 16, v4
            v_pk_mul_f32 v[{x0}:{x0+1}], v[4:5], v[{rc}:{rc+1}] op_sel_hi:[1,0]
            v_pk_fma_f32 v[4:5], v[{x0}:{x0+1}], v[{den}:{den+1}], v[4:5] op_sel_hi:[1,0,1] neg_lo:[1,0,0] neg_hi:[1,0,0]
            v_pk_fma_f32 v[{x0}:{x0+1}], v[4:5], v[{rc}:{rc+1}], v[{x0}:{x0+1}] op_sel_hi:[1,0,1]
            v_cvt_pk_bf16_f32 v{o+k//2}, v{x0}, v{x0+1}
            """)
        a(f"buffer_store_dwordx4 v[{o}:{o+3}], v3, s[80:83], s18 offen offset:{16*r}")
    stamp_flush(0)
    a("s_endpgm")

    a.label("k1_shg")
    if "shg" in SKIP: a("s_endpgm")
    stamp(0)
    a(f"""
    s_load_dwordx4 s[4:7], s[0:1], 64
    s_sub_u32 s16, s2, {K1_KG + K1_LN}
    s_lshl_b32 s16, s16, 2
    s_add_u32 s16, s16, s3
    s_lshr_b32 s17, s16, 4
    s_lshr_b32 s18, s16, 3
    s_and_b32 s18, s18, 1
    s_and_b32 s19, s16, 7
    s_waitcnt lgkmcnt(0)
    """)
    ws_srd(80)
    a(f"""
    s_cmp_eq_u32 s18, 0
    s_cselect_b32 s84, s4, s6
    s_cselect_b32 s85, s5, s7
    s_and_b32 s85, s85, 0xffff
    s_mov_b32 s86, {512*1792*2}
    s_mov_b32 s87, 0x00020000
    v_lshrrev_b32 v3, 5, v2
    v_mul_u32_u24 v3, {8*3584}, v3
    v_and_b32 v4, 31, v2
    v_lshl_add_u32 v3, v4, 1, v3
    s_lshl_b32 s20, s17, 6
    v_add_u32 v3, s20, v3
    s_mul_i32 s20, s19, {64*3584}
    """)
    for fr in range(4):
        for e in range(8):
            a(f"""
            buffer_load_ushort v{10+8*fr+e}, v3, s[84:87], s20 offen
            s_add_u32 s20, s20, 3584
            """)
        a(f"s_add_u32 s20, s20, {8*3584}")
    a(f"""
    s_lshl_b32 s20, s17, 1
    s_add_u32 s20, s20, s18
    s_lshl_b32 s20, s20, 15
    s_lshl_b32 s21, s19, 12
    s_add_u32 s20, s20, s21
    s_add_u32 s20, s20, {WGF}
    v_lshlrev_b32 v4, 4, v2
    """)
    for fr in range(4):
        a(f"s_waitcnt vmcnt({24-8*fr})")
        for i in range(4):
            a(f"v_lshl_or_b32 v{50+4*fr+i}, v{10+8*fr+2*i+1}, 16, v{10+8*fr+2*i}")
        a(f"buffer_store_dwordx4 v[{50+4*fr}:{53+4*fr}], v4, s[80:83], s20 offen offset:{1024*fr}")
    stamp_flush(0)
    a("s_endpgm")

    a.label("k1_end")
    a("s_endpgm")


K2_CV = 256
K2_G1 = 224
K2_SD = 32
K2_TOTAL = K2_CV + K2_G1 + K2_SD
K2_LDS = 73728


def gen_k2():
    a.raw(".text")
    a.raw(".globl k2_kernel")
    a.raw(".p2align 8")
    a.raw(".type k2_kernel,@function")
    a.label("k2_kernel")
    a(f"""
    s_cmp_ge_u32 s2, {K2_TOTAL}
    s_cbranch_scc1 k2_end
    s_load_dwordx2 s[14:15], s[0:1], 104
    v_lshrrev_b32 v1, 6, v0
    v_and_b32 v2, 63, v0
    v_readfirstlane_b32 s3, v1
    v_lshlrev_b32 v3, 4, v2
    s_waitcnt lgkmcnt(0)
    """)
    ws_srd(80)
    a(f"""
    s_cmp_ge_u32 s2, {K2_CV + K2_G1}
    s_cbranch_scc1 k2_shd
    s_mov_b32 s97, s2
    s_add_u32 s2, s2, {K2_CV}
    s_cmp_lt_u32 s97, {K2_G1}
    s_cbranch_scc1 k2_gemm
    s_sub_u32 s2, s97, {K2_G1}
    """)
    if "conv" in SKIP: a("s_endpgm")
    a(f"s_setprio {PR[2]}")
    SREG[0] = 230
    stamp(0)
    RED = 2 * IMG_STRIDE
    a(f"""
    s_lshr_b32 s16, s3, 1
    s_and_b32 s17, s3, 1
    s_lshl_b32 s18, s2, 1
    s_add_u32 s18, s18, s16
    s_mul_i32 s20, s16, {IMG_STRIDE}
    """)
    a(f"""
    s_lshl_b32 s21, s18, 12
    s_lshl_b32 s22, s17, 11
    s_add_u32 s21, s21, s22
    s_add_u32 s21, s21, {KT}
    buffer_load_dwordx4 v[40:43], v3, s[80:83], s21 offen
    buffer_load_dwordx4 v[44:47], v3, s[80:83], s21 offen offset:1024
    """)
    a(f"""
    v_lshrrev_b32 v4, 5, v2
    v_lshlrev_b32 v4, 15, v4
    v_and_b32 v34, 31, v2
    v_lshl_add_u32 v4, v34, 4, v4
    s_lshr_b32 s22, s2, 2
    s_lshl_b32 s22, s22, 9
    s_and_b32 s23, s2, 3
    s_lshl_b32 s23, s23, 2
    s_add_u32 s22, s22, s23
    s_lshl_b32 s23, s3, 19
    s_add_u32 s22, s22, s23
    """)
    for i in range(8):
        a(f"buffer_load_dword v{128+i}, v4, s[80:83], s22 offen")
        if i < 7:
            a("s_add_u32 s22, s22, 65536")
    a(f"""
    v_lshrrev_b32 v24, 5, v2
    v_mul_u32_u24 v24, {96*16}, v24
    v_lshl_add_u32 v24, v34, 4, v24
    s_mul_i32 s84, s17, {4*96*16}
    s_add_u32 s84, s84, s20
    s_add_u32 s84, s84, {KF_OFF}
    v_add_u32 v24, s84, v24
    v_mov_b32 v28, 0
    v_mov_b32 v29, 0
    v_mov_b32 v30, 0
    v_mov_b32 v31, 0
    ds_write_b128 v24, v[28:31]
    ds_write_b128 v24, v[28:31] offset:{2*96*16}
    v_lshlrev_b32 v25, 1, v2
    v_add_u32 v25, {2*2048}, v25
    s_cmp_lg_u32 s3, 0
    s_cbranch_scc1 k2_cv_nozero
    v_cmp_gt_u32 vcc, 32, v2
    s_and_saveexec_b64 s[24:25], vcc
    ds_write_b16 v25, v28 offset:{UR_O}
    ds_write_b16 v25, v28 offset:{UR_O + IMG_STRIDE}
    v_cmp_gt_u32 vcc, 31, v2
    s_and_b64 exec, exec, vcc
    ds_write_b16 v25, v28 offset:2
    ds_write_b16 v25, v28 offset:{2 + IMG_STRIDE}
    s_mov_b64 exec, s[24:25]
    """)
    a.label("k2_cv_nozero")
    a(f"""
    s_lshl_b32 s84, s17, 4
    v_lshlrev_b32 v26, 5, v2
    v_add_u32 v26, s84, v26
    s_lshl_b32 s84, s16, 12
    s_add_u32 s84, s84, {RED}
    """)
    for e in range(16):
        a(f"""
        v_add_u32 v20, {e}, v26
        v_cvt_f32_u32 v20, v20
        v_cvt_pk_bf16_f32 v20, v20, v20
        v_lshlrev_b32 v20, 16, v20
        v_cvt_u32_f32 v20, v20
        v_lshrrev_b32 v21, 8, v20
        v_and_b32 v22, 7, v20
        v_lshrrev_b32 v23, 1, v20
        v_and_b32 v23, 0x7c, v23
        v_lshrrev_b32 v24, 1, v22
        v_add_u32 v24, 8, v24
        v_lshrrev_b32 v25, 2, v22
        v_lshl_add_u32 v25, v21, 1, v25
        v_add_u32 v25, 8, v25
        v_add_u32 v27, 12, v21
        v_cmp_le_u32 vcc, 1, v21
        v_add_u32 v23, s84, v23
        s_nop 0
        v_cndmask_b32 v22, v22, v24, vcc
        v_cmp_le_u32 vcc, 2, v21
        s_nop 1
        v_cndmask_b32 v22, v22, v25, vcc
        v_cmp_le_u32 vcc, 4, v21
        s_nop 1
        v_cndmask_b32 v22, v22, v27, vcc
        v_lshl_add_u32 v{136+e}, v22, 7, v23
        """)
    a(f"""
    v_lshrrev_b32 v20, 5, v2
    v_lshlrev_b32 v20, 3, v20
    v_sub_u32 v20, v20, v34
    v_lshlrev_b32 v20, 1, v20
    v_and_b32 v21, 1, v34
    v_mul_u32_u24 v21, {UR_O - 2}, v21
    v_add_u32 v20, v20, v21
    s_lshl_b32 s21, s17, 5
    s_add_u32 s21, s21, s20
    s_add_u32 s21, s21, {2*(2048 - 16*126)}
    v_add_u32 v152, s21, v20
    v_add_u32 v153, 1024, v152
    v_add_u32 v154, 2048, v152
    v_add_u32 v155, 3072, v152
    v_lshrrev_b32 v20, 5, v2
    v_mul_u32_u24 v20, {96*16}, v20
    v_lshl_add_u32 v20, v34, 4, v20
    s_mul_i32 s21, s17, {2*96*16}
    s_add_u32 s21, s21, s20
    s_add_u32 s21, s21, {KF_OFF - 31*16}
    v_add_u32 v156, s21, v20
    s_lshl_b32 s23, s3, 10
    s_sub_u32 s23, {4096 - 2*448}, s23
    v_lshlrev_b32 v157, 1, v2
    v_sub_u32 v157, s23, v157
    v_lshrrev_b32 v158, 5, v2
    v_lshlrev_b32 v158, 9, v158
    v_lshl_add_u32 v158, v34, 2, v158
    s_lshl_b32 s84, s3, 11
    s_add_u32 s84, s84, {RED}
    v_add_u32 v158, s84, v158
    s_mul_i32 s84, s17, {2*96*16}
    s_add_u32 s84, s84, s20
    s_add_u32 s84, s84, {KF_OFF + 32*16}
    v_add_u32 v159, s84, v3
    """)
    a("s_waitcnt vmcnt(8)")
    stamp(3)
    for g in range(2):
        for r in range(4):
            a(f"ds_write_b32 v158, v{40+4*g+r} offset:{1024*g+128*r}")
    for i in range(8):
        o = 128 * (7 - i)
        a(f"""
        s_waitcnt vmcnt({7-i})
        ds_write_b16 v157, v{128+i} offset:{o}
        ds_write_b16 v157, v{128+i} offset:{o + UR_O - 2}
        ds_write_b16_d16_hi v157, v{128+i} offset:{o + IMG_STRIDE}
        ds_write_b16_d16_hi v157, v{128+i} offset:{o + IMG_STRIDE + UR_O - 2}
        """)
    a(f"""
    s_waitcnt lgkmcnt(0)
    s_barrier
    """)
    stamp(4)
    for e in range(16):
        b = 40 + 2 * e
        a(f"ds_read_b32 v{b}, v{136+e}")
    for i in range(32):
        a(f"v_mov_b32 v{160+i}, 0")
    a("s_waitcnt lgkmcnt(0)")
    for uu in range(2):
        for i in range(4):
            e0 = 40 + 16 * uu + 4 * i
            e1 = e0 + 2
            a(f"""
            v_cvt_pk_bf16_f32 v{20+8*uu+i}, v{e0}, v{e1}
            v_lshlrev_b32 v12, 16, v{20+8*uu+i}
            v_and_b32 v13, 0xffff0000, v{20+8*uu+i}
            v_sub_f32 v12, v{e0}, v12
            v_sub_f32 v13, v{e1}, v13
            v_cvt_pk_bf16_f32 v{24+8*uu+i}, v12, v13
            """)
        a(f"""
        ds_write_b128 v159, v[{20+8*uu}:{23+8*uu}] offset:{96*16*uu}
        ds_write_b128 v159, v[{24+8*uu}:{27+8*uu}] offset:{96*16*uu + 4*96*16}
        """)
    a(f"""
    s_waitcnt lgkmcnt(0)
    s_barrier
    """)
    a(f"s_setprio {PR[3]}")
    stamp(1)
    NSET = 3
    SETB = 64
    CACC = 160

    def cv_reads(dl):
        st = SETB + 20 * (dl % NSET)
        off = 64 * (63 - dl)
        base = 152 + off // 1024
        o = (off % 1024) // 4
        a(f"ds_read2_b32 v[{st}:{st+1}], v{base} offset0:{o} offset1:{o+1}")
        a(f"ds_read2_b32 v[{st+2}:{st+3}], v{base} offset0:{o+2} offset1:{o+3}")
        n = 2
        for c in ((1, 0) if dl < 32 else (1,)):
            for hl in range(2):
                r = st + 4 + 8 * c + 4 * hl
                a(f"ds_read_b128 v[{r}:{r+3}], v156 offset:{16*(63-dl) + 512*c + 6144*hl}")
                n += 1
        return n

    cnt = {}
    cnt[0] = cv_reads(0)
    cnt[1] = cv_reads(1)
    for dl in range(64):
        if dl + 2 < 64:
            cnt[dl + 2] = cv_reads(dl + 2)
        pend = sum(cnt[x] for x in (dl + 1, dl + 2) if x < 64)
        a(f"s_waitcnt lgkmcnt({pend})")
        st = SETB + 20 * (dl % NSET)
        for c in ((1, 0) if dl < 32 else (1,)):
            for hl in range(2):
                r = st + 4 + 8 * c + 4 * hl
                acc = CACC + 16 * c
                a(f"v_mfma_f32_32x32x16_bf16 v[{acc}:{acc+15}], v[{st}:{st+3}], v[{r}:{r+3}], v[{acc}:{acc+15}]")
    stamp(2)
    a("""
    s_nop 7
    s_nop 3
    v_and_b32 v4, 31, v2
    """)
    for i in range(32):
        a(f"v_mov_b32 v{64+i}, v{CACC+i}")
    a(f"""
    s_lshl_b32 s21, s3, 12
    s_add_u32 s21, s21, {RED}
    v_add_u32 v5, s21, v3
    s_xor_b32 s21, s3, 1
    s_lshl_b32 s21, s21, 12
    s_add_u32 s21, s21, {RED}
    v_add_u32 v6, s21, v3
    s_nop 7
    s_cmp_eq_u32 s17, 0
    s_cbranch_scc1 k2_cv_sp0
    """)
    for g in range(4):
        a(f"ds_write_b128 v5, v[{64+4*g}:{67+4*g}] offset:{1024*g}")
    a("s_nop 1")
    for i in range(16):
        a(f"v_mov_b32 v{64+i}, v{80+i}")
    a("s_branch k2_cv_join")
    a.label("k2_cv_sp0")
    for g in range(4):
        a(f"ds_write_b128 v5, v[{80+4*g}:{83+4*g}] offset:{1024*g}")
    a.label("k2_cv_join")
    a(f"""
    s_waitcnt lgkmcnt(0)
    s_barrier
    """)
    for g in range(4):
        a(f"ds_read_b128 v[{100+4*g}:{103+4*g}], v6 offset:{1024*g}")
    a(f"""
    v_lshlrev_b32 v5, 6, v4
    v_lshrrev_b32 v7, 5, v2
    v_lshl_add_u32 v5, v7, 3, v5
    s_lshl_b32 s21, s18, 12
    s_lshl_b32 s22, s17, 11
    s_add_u32 s21, s21, s22
    s_add_u32 s21, s21, {YT}
    s_waitcnt lgkmcnt(0)
    """)
    for g in range(4):
        for r in range(4):
            a(f"v_add_f32 v{64+4*g+r}, v{64+4*g+r}, v{100+4*g+r}")
        a(f"""
        v_cvt_pk_bf16_f32 v{120+2*g}, v{64+4*g}, v{65+4*g}
        v_cvt_pk_bf16_f32 v{121+2*g}, v{66+4*g}, v{67+4*g}
        buffer_store_dwordx2 v[{120+2*g}:{121+2*g}], v5, s[80:83], s21 offen offset:{16*g}
        """)
    stamp_flush(1)
    a("s_endpgm")

    a.label("k2_gemm")
    if "gemm1" in SKIP: a("s_endpgm")
    a(f"s_setprio {PR[0]}")
    SREG[0] = 100
    stamp(0)
    a(f"""
    s_sub_u32 s16, s2, {K2_CV}
    s_and_b32 s17, s16, 15
    s_lshr_b32 s18, s16, 4
    s_lshl_b32 s19, s18, 2
    s_add_u32 s19, s19, s3
    s_lshl_b32 s20, s17, 2
    s_add_u32 s21, s20, s3
    s_lshl_b32 s22, s19, 16
    s_add_u32 s22, s22, {WGF}
    s_add_u32 s23, s22, 32768
    s_lshl_b32 s24, s21, 15
    s_add_u32 s24, s24, {XNF}
    s_mul_i32 s25, s3, 3072
    v_add_u32 v4, s25, v3
    v_add_u32 v5, {3*12288}, v4
    v_add_u32 v6, {3*12288}, v3
    """)
    NB = 6

    def dma_parts(k):
        b = k % NB
        return [
            f"""s_add_u32 s26, s25, {b*12288}
            s_mov_b32 m0, s26
            s_add_u32 s26, s26, 1024
            buffer_load_dwordx4 v3, s[80:83], s22 offen lds
            s_add_u32 s22, s22, 1024""",
            f"""s_mov_b32 m0, s26
            s_add_u32 s26, s26, 1024
            buffer_load_dwordx4 v3, s[80:83], s23 offen lds
            s_add_u32 s23, s23, 1024""",
            f"""s_mov_b32 m0, s26
            s_nop 0
            buffer_load_dwordx4 v3, s[80:83], s24 offen lds
            s_add_u32 s24, s24, 1024""",
        ]

    def read_parts(k):
        b = k % NB
        f = 16 + 24 * (k % 2)
        va = 4 if b < 3 else 5
        vb = 3 if b < 3 else 6
        bo = (b % 3) * 12288
        out = [f"ds_read_b128 v[{f}:{f+3}], v{va} offset:{bo}",
               f"ds_read_b128 v[{f+8}:{f+11}], v{vb} offset:{bo + 2048}",
               f"ds_read_b128 v[{f+4}:{f+7}], v{va} offset:{bo + 1024}"]
        for t in range(1, 4):
            out.append(f"ds_read_b128 v[{f+8+4*t}:{f+11+4*t}], v{vb} offset:{bo + 3072*t + 2048}")
        return out

    for k in range(5):
        for p in dma_parts(k):
            a(p)
    ACC = 128
    for i in range(128):
        a(f"v_mov_b32 v{ACC+i}, 0")
    a("""
    s_waitcnt vmcnt(12)
    s_barrier
    """)
    stamp(1)
    for p in read_parts(0):
        a(p)
    for k in range(32):
        n = 3 * max(0, min(k + 4, 31) - (k + 1))
        if k + 1 < 32:
            a(f"s_waitcnt vmcnt({n}) lgkmcnt(0)")
            a("s_barrier")
        else:
            a("s_waitcnt lgkmcnt(0)")
        if k == 16: stamp(2)
        rp = read_parts(k + 1) if k + 1 < 32 else []
        dp = dma_parts(k + 5) if k + 5 < 32 else []
        f = 16 + 24 * (k % 2)
        mf = []
        for t in range(4):
            for gu in range(2):
                acc = ACC + 64 * gu + 16 * t
                mf.append(f"v_mfma_f32_32x32x16_bf16 v[{acc}:{acc+15}], v[{f+4*gu}:{f+4*gu+3}], v[{f+8+4*t}:{f+11+4*t}], v[{acc}:{acc+15}]")
        fill = [rp[0:2], rp[2:4], rp[4:6], dp[0:1], dp[1:2], dp[2:3], [], []]
        for m, fl in zip(mf, fill):
            a(m)
            for x in fl:
                a(x)
    stamp(3)
    a(f"s_setprio {PR[1]}")
    K0 = hx(f2u(-2.0 * 0.7978845608028654 * L2E))
    K1c = hx(f2u(-2.0 * 0.7978845608028654 * 0.044715 * L2E))
    a(f"""
    v_mov_b32 v60, {K0}
    v_mov_b32 v62, {K1c}
    v_mov_b32 v64, 1.0
    s_mul_i32 s28, s20, {112*1024}
    s_lshl_b32 s29, s19, 11
    s_add_u32 s28, s28, s29
    s_add_u32 s28, s28, {HF}
    s_nop 7
    """)
    for t in range(4):
        for half in range(2):
            o = 16 + 4 * ((2 * t + half) % 4)
            blocks = []
            for i in range(4):
                g0 = ACC + 16 * t + 8 * half + 2 * i
                u0 = g0 + 64
                tb = 66 + 8 * i
                A, B, C, D = tb, tb + 2, tb + 4, tb + 6
                blocks.append([
                    f"v_cvt_pk_bf16_f32 v{C}, v{g0}, v{g0+1}",
                    f"v_cvt_pk_bf16_f32 v{D}, v{u0}, v{u0+1}",
                    f"v_lshlrev_b32 v{A}, 16, v{C}",
                    f"v_and_b32 v{A+1}, 0xffff0000, v{C}",
                    f"v_mul_f32 v{B}, v{A}, v{A}",
                    f"v_mul_f32 v{B+1}, v{A+1}, v{A+1}",
                    f"v_fma_f32 v{B}, v{B}, v62, v60",
                    f"v_fma_f32 v{B+1}, v{B+1}, v62, v60",
                    f"v_mul_f32 v{B}, v{B}, v{A}",
                    f"v_mul_f32 v{B+1}, v{B+1}, v{A+1}",
                    f"v_exp_f32 v{B}, v{B}",
                    f"v_exp_f32 v{B+1}, v{B+1}",
                    f"v_lshlrev_b32 v{C}, 16, v{D}",
                    f"v_and_b32 v{C+1}, 0xffff0000, v{D}",
                    f"v_add_f32 v{B}, 1.0, v{B}",
                    f"v_add_f32 v{B+1}, 1.0, v{B+1}",
                    f"v_rcp_f32 v{B}, v{B}",
                    f"v_rcp_f32 v{B+1}, v{B+1}",
                    f"v_mul_f32 v{B}, v{B}, v{A}",
                    f"v_mul_f32 v{B+1}, v{B+1}, v{A+1}",
                    f"v_cvt_pk_bf16_f32 v{B}, v{B}, v{B+1}",
                    f"v_lshlrev_b32 v{A}, 16, v{B}",
                    f"v_and_b32 v{A+1}, 0xffff0000, v{B}",
                    f"v_mul_f32 v{A}, v{A}, v{C}",
                    f"v_mul_f32 v{A+1}, v{A+1}, v{C+1}",
                    f"v_cvt_pk_bf16_f32 v{o+i}, v{A}, v{A+1}",
                ])
            for j in range(len(blocks[0])):
                for bl in blocks:
                    a(bl[j])
            a(f"buffer_store_dwordx4 v[{o}:{o+3}], v3, s[80:83], s28 offen offset:{1024*half}")
        a(f"s_add_u32 s28, s28, {112*1024}")
    stamp_flush(1)
    a("s_endpgm")
    a.label("k2_shd")
    a(f"""
    s_load_dwordx2 s[4:5], s[0:1], 80
    s_sub_u32 s16, s2, {K2_CV + K2_G1}
    s_lshl_b32 s16, s16, 2
    s_add_u32 s16, s16, s3
    s_lshr_b32 s17, s16, 4
    s_and_b32 s18, s16, 15
    v_lshrrev_b32 v5, 5, v2
    v_lshlrev_b32 v5, 12, v5
    v_and_b32 v4, 31, v2
    v_lshl_add_u32 v5, v4, 1, v5
    s_lshl_b32 s20, s18, 6
    v_add_u32 v5, s20, v5
    s_mul_i32 s20, s17, {14*16*1024}
    s_mul_i32 s22, s18, {112*1024}
    s_mul_i32 s21, s17, {14*1024}
    s_add_u32 s22, s22, s21
    s_add_u32 s22, s22, {WDF}
    s_waitcnt lgkmcnt(0)
    s_mov_b32 s84, s4
    s_and_b32 s85, s5, 0xffff
    s_mov_b32 s86, {512*1792*2}
    s_mov_b32 s87, 0x00020000
    """)
    for half in range(2):
        for fr in range(7):
            for e in range(8):
                f = 16 * (7 * half + fr) + 8 * (e >> 2) + (e & 3)
                a(f"""
                s_add_u32 s21, s20, {f*1024}
                buffer_load_ushort v{10+8*fr+e}, v5, s[84:87], s21 offen
                """)
        for fr in range(7):
            a(f"s_waitcnt vmcnt({48-8*fr + fr})")
            for i in range(4):
                a(f"v_lshl_or_b32 v{70+4*fr+i}, v{10+8*fr+2*i+1}, 16, v{10+8*fr+2*i}")
            a(f"""
            s_add_u32 s21, s22, {(7*half+fr)*1024}
            buffer_store_dwordx4 v[{70+4*fr}:{73+4*fr}], v3, s[80:83], s21 offen
            """)
        if half == 0:
            a("s_waitcnt vmcnt(0)")
    a.label("k2_end")
    a("s_endpgm")


K3_TOTAL = 256
K3_LDS = 131072


def gen_k3():
    a.raw(".text")
    a.raw(".globl k3_kernel")
    a.raw(".p2align 8")
    a.raw(".type k3_kernel,@function")
    a.label("k3_kernel")
    a(f"""
    s_cmp_ge_u32 s2, {K3_TOTAL}
    s_cbranch_scc1 k3_end
    s_load_dwordx2 s[14:15], s[0:1], 104
    s_load_dwordx2 s[4:5], s[0:1], 0
    s_load_dwordx2 s[6:7], s[0:1], 48
    s_load_dwordx2 s[8:9], s[0:1], 88
    v_lshrrev_b32 v1, 6, v0
    v_and_b32 v2, 63, v0
    v_readfirstlane_b32 s3, v1
    v_lshlrev_b32 v3, 4, v2
    s_lshr_b32 s18, s2, 3
    s_and_b32 s16, s18, 7
    s_lshr_b32 s18, s18, 3
    s_and_b32 s17, s2, 7
    s_lshl_b32 s17, s17, 2
    s_add_u32 s17, s17, s18
    s_waitcnt lgkmcnt(0)
    """)
    ws_srd(80)
    a(f"""
    s_and_b32 s19, s3, 1
    s_lshl_b32 s20, s16, 1
    s_add_u32 s20, s20, s19
    s_mul_i32 s20, s20, {112*1024}
    s_add_u32 s20, s20, {WDF}
    s_lshl_b32 s21, s17, 1
    s_add_u32 s21, s21, s19
    s_mul_i32 s21, s21, {112*1024}
    s_add_u32 s21, s21, {HF}
    s_cmp_lt_u32 s3, 2
    s_cselect_b32 s20, s20, s21
    s_lshl_b32 s25, s3, 12
    """)
    SREG[0] = 90
    stamp(0)
    NBUF = 8
    NST = 28

    def dma(st):
        b = st % NBUF
        return [f"""
        s_add_u32 s26, s25, {b*16384}
        s_mov_b32 m0, s26
        s_nop 0
        buffer_load_dwordx4 v3, s[80:83], s20 offen lds
        buffer_load_dwordx4 v3, s[80:83], s20 offen offset:1024 lds
        """, f"""
        buffer_load_dwordx4 v3, s[80:83], s20 offen offset:2048 lds
        buffer_load_dwordx4 v3, s[80:83], s20 offen offset:3072 lds
        s_add_u32 s20, s20, 4096
        """]

    for st in range(NBUF - 1):
        for p in dma(st):
            a(p)
    a(f"""
    s_mov_b32 s84, s4
    s_and_b32 s85, s5, 0xffff
    s_mov_b32 s86, 0x200000
    s_mov_b32 s87, 0x00020000
    s_mov_b32 s88, s6
    s_and_b32 s89, s7, 0xffff
    s_mov_b32 s90, 1024
    s_mov_b32 s91, 0x00020000
    s_mov_b32 s92, s8
    s_and_b32 s93, s9, 0xffff
    s_mov_b32 s94, 0x200000
    s_mov_b32 s95, 0x00020000
    """)
    a(f"""
    s_lshr_b32 s24, s3, 1
    s_and_b32 s22, s3, 1
    s_lshl_b32 s26, s16, 1
    s_add_u32 s26, s26, s24
    s_lshl_b32 s27, s17, 1
    s_add_u32 s27, s27, s22
    v_and_b32 v4, 31, v2
    v_lshrrev_b32 v5, 5, v2
    v_lshlrev_b32 v6, 10, v4
    v_lshl_add_u32 v6, v5, 3, v6
    s_lshl_b32 s28, s27, 15
    s_lshl_b32 s29, s26, 6
    s_add_u32 s28, s28, s29
    v_lshlrev_b32 v7, 4, v4
    v_lshl_add_u32 v7, v5, 3, v7
    s_lshl_b32 s30, s27, 15
    s_lshl_b32 s31, s26, 11
    s_add_u32 s30, s30, s31
    s_add_u32 s30, s30, {XNF}
    v_lshlrev_b32 v8, 3, v5
    v_lshlrev_b32 v9, 14, v5
    v_lshl_add_u32 v9, v4, 1, v9
    s_lshl_b32 s32, s26, 17
    s_lshl_b32 s33, s27, 6
    s_add_u32 s32, s32, s33
    s_add_u32 s32, s32, {YT}
    s_lshl_b32 s24, s24, 12
    s_lshl_b32 s22, s22, 12
    s_add_u32 s22, s22, 8192
    v_add_u32 v50, s24, v3
    v_add_u32 v51, s22, v3
    v_add_u32 v52, 65536, v50
    v_add_u32 v53, 65536, v51
    """)
    ACC = 96
    for i in range(16):
        a(f"v_mov_b32 v{ACC+i}, 0")

    def reads(st):
        b = st % NBUF
        f = 112 + 32 * (st % 2)
        va, vb = (50, 51) if b < 4 else (52, 53)
        bo = (b % 4) * 16384
        out = []
        for k in range(4):
            out.append(f"ds_read_b128 v[{f+8*k}:{f+8*k+3}], v{va} offset:{bo + 1024*k}")
            out.append(f"ds_read_b128 v[{f+8*k+4}:{f+8*k+7}], v{vb} offset:{bo + 1024*k}")
        return out

    a(f"""
    s_waitcnt vmcnt({4*(NBUF-2)})
    s_barrier
    """)
    stamp(1)
    for r in reads(0):
        a(r)
    EPI_AT = 20
    for st in range(NST):
        issued = min(st + NBUF - 2, NST - 1)
        n = 4 * max(0, issued - (st + 1))
        if st > EPI_AT:
            n += 28 if issued <= EPI_AT + NBUF - 1 else 0
        if st + 1 < NST:
            a(f"s_waitcnt vmcnt({min(n,63)}) lgkmcnt(0)")
            a("s_barrier")
        else:
            a("s_waitcnt lgkmcnt(0)")
        if st == 14: stamp(2)
        rp = reads(st + 1) if st + 1 < NST else []
        dp = dma(st + NBUF - 1) if st + NBUF - 1 < NST else []
        f = 112 + 32 * (st % 2)
        fill = [rp[0:4], rp[4:8], dp[0:1], dp[1:2]]
        for k in range(4):
            a(f"v_mfma_f32_32x32x16_bf16 v[{ACC}:{ACC+15}], v[{f+8*k}:{f+8*k+3}], v[{f+8*k+4}:{f+8*k+7}], v[{ACC}:{ACC+15}]")
            for x in fill[k]:
                a(x)
        if st == EPI_AT:
            for g in range(4):
                a(f"buffer_load_dwordx2 v[{10+2*g}:{11+2*g}], v6, s[84:87], s28 offen offset:{16*g}")
                a(f"buffer_load_dwordx2 v[{18+2*g}:{19+2*g}], v7, s[80:83], s30 offen offset:{(g>>1)*1024 + (g&1)*512}")
                a(f"buffer_load_dwordx2 v[{26+2*g}:{27+2*g}], v8, s[88:91], s29 offen offset:{16*g}")
            for g in range(4):
                for r in range(4):
                    if r == 0:
                        a(f"s_add_u32 s33, s32, {8*g*4096}")
                    else:
                        a(f"s_add_u32 s33, s33, 4096")
                    a(f"buffer_load_ushort v{34+4*g+r}, v9, s[80:83], s33 offen")
    stamp(3)
    a(f"""
    s_mov_b32 s34, {hx(L2E_HI | 0x80000000)}
    s_waitcnt vmcnt(0)
    s_nop 11
    """)
    stamp(4)
    for g in range(4):
        for p in range(2):
            c0 = ACC + 4 * g + 2 * p
            xr = 10 + 2 * g + p
            nr = 18 + 2 * g + p
            dr = 26 + 2 * g + p
            y0 = 34 + 4 * g + 2 * p
            a(f"""
            v_cvt_pk_bf16_f32 v52, v{c0}, v{c0+1}
            v_lshlrev_b32 v53, 16, v52
            v_and_b32 v54, 0xffff0000, v52
            v_mul_f32 v55, s34, v53
            v_mul_f32 v56, s34, v54
            v_exp_f32 v55, v55
            v_exp_f32 v56, v56
            v_lshlrev_b32 v57, 16, v{nr}
            v_and_b32 v58, 0xffff0000, v{nr}
            v_lshlrev_b32 v59, 16, v{dr}
            v_and_b32 v60, 0xffff0000, v{dr}
            v_add_f32 v55, 1.0, v55
            v_add_f32 v56, 1.0, v56
            v_rcp_f32 v55, v55
            v_rcp_f32 v56, v56
            v_mul_f32 v57, v57, v59
            v_mul_f32 v58, v58, v60
            v_mul_f32 v55, v55, v53
            v_mul_f32 v56, v56, v54
            v_cvt_pk_bf16_f32 v57, v57, v58
            v_cvt_pk_bf16_f32 v55, v55, v56
            v_lshlrev_b32 v59, 16, v{y0}
            v_lshlrev_b32 v60, 16, v{y0+1}
            v_and_b32 v58, 0xffff0000, v57
            v_lshlrev_b32 v57, 16, v57
            v_add_f32 v57, v57, v59
            v_add_f32 v58, v58, v60
            v_cvt_pk_bf16_f32 v57, v57, v58
            v_and_b32 v56, 0xffff0000, v55
            v_lshlrev_b32 v55, 16, v55
            v_and_b32 v58, 0xffff0000, v57
            v_lshlrev_b32 v57, 16, v57
            v_mul_f32 v57, v57, v55
            v_mul_f32 v58, v58, v56
            v_cvt_pk_bf16_f32 v57, v57, v58
            v_lshlrev_b32 v59, 16, v{xr}
            v_and_b32 v60, 0xffff0000, v{xr}
            v_and_b32 v58, 0xffff0000, v57
            v_lshlrev_b32 v57, 16, v57
            v_add_f32 v57, v57, v59
            v_add_f32 v58, v58, v60
            v_cvt_pk_bf16_f32 v{64+2*g+p}, v57, v58
            """)
        a(f"buffer_store_dwordx2 v[{64+2*g}:{65+2*g}], v6, s[92:95], s28 offen offset:{16*g}")
    stamp_flush(2)
    a.label("k3_end")
    a("s_endpgm")


def descriptor(name, vgpr):
    a.raw(f""".amdhsa_kernel {name}
  .amdhsa_next_free_vgpr {vgpr}
  .amdhsa_next_free_sgpr 102
  .amdhsa_accum_offset {((vgpr+3)//4)*4}
  .amdhsa_group_segment_fixed_size 0
  .amdhsa_kernarg_size 112
  .amdhsa_user_sgpr_count 2
  .amdhsa_user_sgpr_kernarg_segment_ptr 1
  .amdhsa_system_sgpr_workgroup_id_x 1
.end_amdhsa_kernel""")


def main():
    hdr = open(f"cdna_kernels/{NAME}.s.ref").read().split("\n")
    keep = []
    for ln in hdr:
        if not ln.startswith(";"):
            break
        if "@launch" in ln or "Override launch" in ln or "grid=ceil" in ln:
            continue
        keep.append(ln)
    out = "\n".join(keep) + "\n"
    out += f"; @launch kernel=k1_kernel grid=({K1_TOTAL},1,1) block=(256,1,1) lds=20480\n"
    out += f"; @launch kernel=k2_kernel grid=({K2_TOTAL},1,1) block=(256,1,1) lds={K2_LDS}\n"
    out += f"; @launch kernel=k3_kernel grid=({K3_TOTAL},1,1) block=(256,1,1) lds={K3_LDS}\n"
    out += '.amdgcn_target "amdgcn-amd-amdhsa--gfx950"\n'
    gen_k1()
    gen_k2()
    gen_k3()
    a.raw('.section .rodata,"a"')
    a.raw(".p2align 6")
    descriptor("k1_kernel", 128)
    a.raw(".p2align 6")
    descriptor("k2_kernel", 256)
    a.raw(".p2align 6")
    descriptor("k3_kernel", 176)
    out += a.text()
    path = sys.argv[1] if len(sys.argv) > 1 else f"cdna_kernels/{NAME}.s"
    open(path, "w").write(out)
    print("wrote", path, len(out), "bytes")


main()
```

```python
import struct, sys
import numpy as np

NAME = "recurrent_scan__ssm_conv_s4d__geglu_ffn__prompt"


def f2u(x):
    return struct.unpack("<I", struct.pack("<f", np.float32(x)))[0]


def hx(x):
    return "0x%08x" % (x & 0xFFFFFFFF)


L2E = 1.4426950408889634
L2E_HI = f2u(L2E)
L2E_LO = f2u(L2E - float(np.float32(L2E)))
I2P = 0.15915494309189535
I2P_HI = f2u(I2P)
I2P_LO = f2u(I2P - float(np.float32(I2P)))
LN2 = f2u(0.6931471805599453)

XNF = 0x0
IMG = 0x200000
IMG_STRIDE = 21504
UR_O = 4160
KF_OFF = 9216
KT = 0x200000
WGF = 0xC80000
WDF = 0x1000000
HF = 0x1200000
YT = 0x1900000
WS_SIZE = 0x1B00000


class Asm:
    def __init__(self):
        self.lines = []

    def __call__(self, s):
        for ln in s.strip("\n").split("\n"):
            ln = ln.strip()
            if ln:
                self.lines.append("    " + ln)

    def label(self, l):
        self.lines.append(l + ":")

    def raw(self, s):
        self.lines.append(s)

    def text(self):
        return "\n".join(self.lines) + "\n"


a = Asm()
import os
SKIP = os.environ.get("SKIP", "").split(",")
PR = [int(c) for c in os.environ.get("PR", "3011")]
STAMPS = os.environ.get("STAMPS", "") != ""
STAMP_BASE = 0x1B00000
if STAMPS:
    WS_SIZE = 0x1C00000
SREG = [170]


def stamp(i):
    if not STAMPS:
        return
    a(f"""
    s_memtime s[100:101]
    s_waitcnt lgkmcnt(0)
    v_writelane_b32 v{SREG[0]}, s100, {i}
    """)
    if i == 0:
        a(f"""
        s_memrealtime s[100:101]
        s_waitcnt lgkmcnt(0)
        v_writelane_b32 v{SREG[0]}, s100, 5
        """)


def stamp_flush(kid):
    if not STAMPS:
        return
    a(f"""
    s_memtime s[100:101]
    s_waitcnt lgkmcnt(0)
    v_writelane_b32 v{SREG[0]}, s100, 7
    s_memrealtime s[100:101]
    s_waitcnt lgkmcnt(0)
    v_writelane_b32 v{SREG[0]}, s100, 6
    s_lshl_b32 s100, s2, 3
    s_add_u32 s100, s100, s3
    s_lshl_b32 s100, s100, 5
    s_add_u32 s100, s100, {STAMP_BASE + kid*0x40000}
    v_lshlrev_b32 v{SREG[0]+1}, 2, v2
    v_cmp_gt_u32 vcc, 8, v2
    s_and_saveexec_b64 s[98:99], vcc
    buffer_store_dword v{SREG[0]}, v{SREG[0]+1}, s[80:83], s100 offen
    s_mov_b64 exec, s[98:99]
    """)

K1_KG = 512
K1_LN = 64
K1_SG = 224
K1_SD = 0
K1_TOTAL = K1_KG + K1_LN + K1_SG + K1_SD


def ws_srd(dst, base_lo=14, base_hi=15):
    a(f"""
    s_mov_b32 s{dst}, s{base_lo}
    s_and_b32 s{dst+1}, s{base_hi}, 0xffff
    s_mov_b32 s{dst+2}, {hx(WS_SIZE)}
    s_mov_b32 s{dst+3}, 0x00020000
    """)


def gen_k1():
    a.raw(".text")
    a.raw(".globl k1_kernel")
    a.raw(".p2align 8")
    a.raw(".type k1_kernel,@function")
    a.label("k1_kernel")
    a(f"""
    s_cmp_ge_u32 s2, {K1_TOTAL}
    s_cbranch_scc1 k1_end
    s_load_dwordx2 s[14:15], s[0:1], 104
    v_lshrrev_b32 v1, 6, v0
    v_and_b32 v2, 63, v0
    v_readfirstlane_b32 s3, v1
    s_cmp_lt_u32 s2, {K1_LN}
    s_cbranch_scc1 k1_ln
    s_cmp_lt_u32 s2, {K1_KG + K1_LN}
    s_cbranch_scc1 k1_kgen
    s_branch k1_shg
    """)
    a.label("k1_kgen")
    if "kgen" in SKIP: a("s_endpgm")
    a("s_mov_b32 s97, s2")
    a(f"s_sub_u32 s2, s2, {K1_LN}")
    SREG[0] = 38
    stamp(0)
    a(f"""
    s_load_dwordx8 s[4:11], s[0:1], 8
    s_load_dwordx2 s[12:13], s[0:1], 40
    v_and_b32 v3, 31, v2
    s_lshl_b32 s84, s2, 8
    s_lshl_b32 s85, s3, 6
    s_add_u32 s84, s84, s85
    v_lshlrev_b32 v9, 1, v3
    v_add_u32 v9, s84, v9
    s_waitcnt lgkmcnt(0)
    """)
    ws_srd(80)
    for i in range(4):
        a(f"""
        s_mov_b32 s{16+4*i}, s{4+2*i}
        s_and_b32 s{17+4*i}, s{5+2*i}, 0xffff
        s_mov_b32 s{18+4*i}, 131072
        s_mov_b32 s{19+4*i}, 0x00020000
        """)
    a(f"""
    s_lshr_b32 s85, s2, 1
    s_lshl_b32 s85, s85, 2
    s_add_u32 s12, s12, s85
    s_addc_u32 s13, s13, 0
    s_load_dword s86, s[12:13], 0
    buffer_load_ushort v10, v9, s[16:19], 0 offen
    buffer_load_ushort v11, v9, s[20:23], 0 offen
    buffer_load_ushort v12, v9, s[24:27], 0 offen
    buffer_load_ushort v13, v9, s[28:31], 0 offen
    s_mov_b32 s88, {hx(L2E_HI)}
    s_mov_b32 s89, {hx(L2E_LO)}
    s_mov_b32 s90, {hx(I2P_HI)}
    s_mov_b32 s91, {hx(I2P_LO)}
    v_lshlrev_b32 v20, 1, v3
    v_add_u32 v20, 240, v20
    v_subrev_u32 v21, 12, v3
    v_lshrrev_b32 v22, 1, v21
    v_lshlrev_b32 v22, 8, v22
    v_and_b32 v21, 1, v21
    v_lshlrev_b32 v21, 2, v21
    v_add_u32 v21, v21, v22
    v_add_u32 v21, 512, v21
    v_subrev_u32 v22, 12, v3
    v_lshlrev_b32 v22, 8, v22
    v_mov_b32 v23, 0
    v_mov_b32 v5, v3
    v_cmp_le_u32 vcc, 8, v3
    s_nop 1
    v_cndmask_b32 v5, v5, v20, vcc
    v_cmp_le_u32 vcc, 12, v3
    s_nop 1
    v_cndmask_b32 v5, v5, v21, vcc
    v_cmp_le_u32 vcc, 16, v3
    s_nop 1
    v_cndmask_b32 v5, v5, v22, vcc
    v_cmp_le_u32 vcc, 21, v3
    s_nop 1
    v_cndmask_b32 v5, v5, v23, vcc
    v_cvt_f32_u32 v5, v5
    v_lshlrev_b32 v6, 3, v3
    v_cvt_f32_u32 v6, v6
    s_mul_i32 s87, s3, 640
    s_add_u32 s87, s87, 16384
    v_lshlrev_b32 v4, 2, v3
    v_add_u32 v4, s87, v4
    v_lshrrev_b32 v9, 5, v2
    v_lshlrev_b32 v9, 4, v9
    v_add_u32 v9, s87, v9
    """)
    for i in range(16):
        a(f"v_mov_b32 v{80+i}, 0")
    a(f"""
    s_waitcnt lgkmcnt(0)
    s_lshr_b32 s87, s86, 16
    s_and_b32 s86, s86, 0xffff
    s_bitcmp1_b32 s2, 0
    s_cselect_b32 s86, s87, s86
    s_lshl_b32 s86, s86, 16
    v_mov_b32 v24, s86
    v_mul_f32 v14, s88, v24
    v_fma_f32 v15, v24, s88, -v14
    v_fma_f32 v15, v24, s89, v15
    v_exp_f32 v16, v14
    v_mul_f32 v15, {hx(LN2)}, v15
    s_nop 0
    v_fma_f32 v16, v16, v15, v16
    v_cvt_pk_bf16_f32 v16, v16, v16
    v_lshlrev_b32 v7, 16, v16
    v_add_f32 v8, v7, v7
    s_waitcnt vmcnt(0)
    v_lshlrev_b32 v10, 16, v10
    v_lshlrev_b32 v11, 16, v11
    v_lshlrev_b32 v12, 16, v12
    v_lshlrev_b32 v13, 16, v13
    v_mul_f32 v14, s88, v10
    v_fma_f32 v15, v10, s88, -v14
    v_fma_f32 v15, v10, s89, v15
    v_exp_f32 v16, v14
    v_mul_f32 v15, {hx(LN2)}, v15
    v_mul_f32 v11, v11, v7
    v_fma_f32 v16, v16, v15, v16
    v_mul_f32 v18, s90, v11
    v_cvt_pk_bf16_f32 v16, v16, v16
    v_fma_f32 v19, v11, s90, -v18
    v_lshlrev_b32 v16, 16, v16
    v_fma_f32 v19, v11, s91, v19
    v_mul_f32 v16, v16, v7
    v_mul_f32 v20, v12, v8
    v_mul_f32 v21, v13, v8
    v_mul_f32 v17, {hx(L2E_HI | 0x80000000)}, v16
    ds_write_b32 v4, v18 offset:128
    ds_write_b32 v4, v19 offset:256
    ds_write_b32 v4, v20 offset:384
    ds_write_b32 v4, v21 offset:512
    ds_write_b32 v4, v17 offset:0
    s_waitcnt lgkmcnt(0)
    """)
    stamp(1)

    def kg_read(g):
        pb = 40 + 20 * (g % 2)
        for p in range(5):
            a(f"ds_read_b128 v[{pb+4*p}:{pb+4*p+3}], v9 offset:{128*p + 32*g}")

    kg_read(0)
    for g in range(4):
        if g + 1 < 4:
            kg_read(g + 1)
            a("s_waitcnt lgkmcnt(5)")
        else:
            a("s_waitcnt lgkmcnt(0)")
        pb = 40 + 20 * (g % 2)
        for pair in range(2):
            stages = [[] for _ in range(16)]
            for m in range(2):
                i = 2 * pair + m
                ard2, whi, wlo, cr2, ci2 = (pb + 4 * p + i for p in range(5))
                t = 10 + 12 * m
                rA, rlA, eA, sA, cA, t1, t2, rB, rlB, eB, sB, cB = range(t, t + 12)
                Gr, nGi, Fr, Fi = 96 + 2 * i, 97 + 2 * i, 104 + 2 * i, 105 + 2 * i
                seq = [
                    [f"v_mul_f32 v{rA}, v{whi}, v5", f"v_mul_f32 v{rB}, v{whi}, v6"],
                    [f"v_mul_f32 v{eA}, v{ard2}, v5", f"v_mul_f32 v{eB}, v{ard2}, v6"],
                    [f"v_fma_f32 v{rlA}, v{whi}, v5, -v{rA}", f"v_fma_f32 v{rlB}, v{whi}, v6, -v{rB}"],
                    [f"v_exp_f32 v{eA}, v{eA}", f"v_exp_f32 v{eB}, v{eB}"],
                    [f"v_fma_f32 v{rlA}, v{wlo}, v5, v{rlA}", f"v_fma_f32 v{rlB}, v{wlo}, v6, v{rlB}"],
                    [f"v_fract_f32 v{rA}, v{rA}", f"v_fract_f32 v{rB}, v{rB}"],
                    [f"v_add_f32 v{rA}, v{rA}, v{rlA}", f"v_add_f32 v{rB}, v{rB}, v{rlB}"],
                    [f"v_sin_f32 v{sA}, v{rA}", f"v_cos_f32 v{cA}, v{rA}"],
                    [f"v_sin_f32 v{sB}, v{rB}", f"v_cos_f32 v{cB}, v{rB}"],
                    [f"v_mul_f32 v{t1}, v{ci2}, v{sA}", f"v_mul_f32 v{t2}, v{ci2}, v{cA}"],
                    [f"v_fma_f32 v{t1}, v{cr2}, v{cA}, -v{t1}", f"v_fma_f32 v{t2}, v{cr2}, v{sA}, v{t2}"],
                    [f"v_mul_f32 v{Fr}, v{eB}, v{cB}", f"v_mul_f32 v{Fi}, v{eB}, v{sB}"],
                    [f"v_mul_f32 v{Gr}, v{eA}, v{t1}", f"v_mul_f32_e64 v{nGi}, -v{eA}, v{t2}"],
                    [f"v_cvt_pk_bf16_f32 v{120+i}, v{Fr}, v{Fi}", f"v_cvt_pk_bf16_f32 v{112+i}, v{Gr}, v{nGi}"],
                    [f"v_lshlrev_b32 v{rA}, 16, v{120+i}", f"v_and_b32 v{rlA}, 0xffff0000, v{120+i}",
                     f"v_lshlrev_b32 v{rB}, 16, v{112+i}", f"v_and_b32 v{rlB}, 0xffff0000, v{112+i}"],
                    [f"v_sub_f32 v{Fr}, v{Fr}, v{rA}", f"v_sub_f32 v{Fi}, v{Fi}, v{rlA}",
                     f"v_sub_f32 v{Gr}, v{Gr}, v{rB}", f"v_sub_f32 v{nGi}, v{nGi}, v{rlB}",
                     f"v_cvt_pk_bf16_f32 v{124+i}, v{Fr}, v{Fi}", f"v_cvt_pk_bf16_f32 v{116+i}, v{Gr}, v{nGi}"],
                ]
                for k, st in enumerate(seq):
                    stages[k] += st
            for st in stages:
                for ins in st:
                    a(ins)
        a(f"""
        s_nop 1
        v_mfma_f32_32x32x16_bf16 v[80:95], v[112:115], v[120:123], v[80:95]
        v_mfma_f32_32x32x16_bf16 v[80:95], v[112:115], v[124:127], v[80:95]
        v_mfma_f32_32x32x16_bf16 v[80:95], v[116:119], v[120:123], v[80:95]
        """)
    stamp(2)
    a(f"""
    s_lshl_b32 s84, s3, 12
    v_lshlrev_b32 v10, 4, v2
    v_add_u32 v11, s84, v10
    s_lshl_b32 s84, s3, 10
    v_add_u32 v12, s84, v10
    s_lshl_b32 s85, s2, 12
    s_add_u32 s85, s85, s84
    s_add_u32 s85, s85, {KT}
    s_nop 10
    """)
    for g in range(3):
        a(f"ds_write_b128 v11, v[{80+4*g}:{83+4*g}] offset:{1024*g}")
    a(f"""
    s_waitcnt lgkmcnt(0)
    s_barrier
    s_cmp_eq_u32 s3, 3
    s_cbranch_scc1 k1_end
    """)
    stamp(3)
    for w in range(4):
        a(f"ds_read_b128 v[{40+4*w}:{43+4*w}], v12 offset:{4096*w}")
    a("s_waitcnt lgkmcnt(0)")
    for r in range(4):
        a(f"""
        v_add_f32 v{40+r}, v{40+r}, v{44+r}
        v_add_f32 v{48+r}, v{48+r}, v{52+r}
        """)
    for r in range(4):
        a(f"v_add_f32 v{40+r}, v{40+r}, v{48+r}")
    a("buffer_store_dwordx4 v[40:43], v10, s[80:83], s85 offen")
    a("s_mov_b32 s2, s97")
    stamp_flush(0)
    a("s_endpgm")

    a.label("k1_ln")
    if "ln" in SKIP: a("s_endpgm")
    SREG[0] = 126
    stamp(0)
    a(f"""
    s_load_dwordx2 s[4:5], s[0:1], 0
    s_setprio 3
    s_mov_b32 s16, s2
    s_lshl_b32 s16, s16, 2
    s_add_u32 s16, s16, s3
    s_lshl_b32 s17, s16, 3
    s_lshl_b32 s18, s17, 10
    v_lshlrev_b32 v3, 4, v2
    s_waitcnt lgkmcnt(0)
    """)
    ws_srd(80)
    a(f"""
    s_mov_b32 s84, s4
    s_and_b32 s85, s5, 0xffff
    s_mov_b32 s86, 0x200000
    s_mov_b32 s87, 0x00020000
    """)
    for r in range(8):
        if r == 4:
            a("s_add_u32 s18, s18, 4096")
        a(f"buffer_load_dwordx4 v[{8+4*r}:{11+4*r}], v3, s[84:87], s18 offen offset:{(r%4)*1024}")

    def val(r, k):
        return 40 + 8 * r + k

    SUM = 104
    for r in range(8):
        a(f"s_waitcnt vmcnt({7-r})")
        for i in range(4):
            a(f"""
            v_lshlrev_b32 v{val(r,2*i)}, 16, v{8+4*r+i}
            v_and_b32 v{val(r,2*i+1)}, 0xffff0000, v{8+4*r+i}
            """)
        a(f"""
        v_pk_add_f32 v[4:5], v[{val(r,0)}:{val(r,1)}], v[{val(r,2)}:{val(r,3)}]
        v_pk_add_f32 v[6:7], v[{val(r,4)}:{val(r,5)}], v[{val(r,6)}:{val(r,7)}]
        v_pk_add_f32 v[4:5], v[4:5], v[6:7]
        v_add_f32 v{SUM+r}, v4, v5
        """)

    def dpp_reduce(base):
        for mod in ["row_shr:1 row_mask:0xf bank_mask:0xf bound_ctrl:0",
                    "row_shr:2 row_mask:0xf bank_mask:0xf bound_ctrl:0",
                    "row_shr:4 row_mask:0xf bank_mask:0xf bound_ctrl:0",
                    "row_shr:8 row_mask:0xf bank_mask:0xf bound_ctrl:0",
                    "row_bcast:15 row_mask:0xa bank_mask:0xf",
                    "row_bcast:31 row_mask:0xc bank_mask:0xf"]:
            for r in range(8):
                a(f"v_add_f32_dpp v{base+r}, v{base+r}, v{base+r} {mod}")

    stamp(1)
    a("s_nop 1")
    dpp_reduce(SUM)
    a("s_nop 1")
    for r in range(8):
        a(f"v_readlane_b32 s{20+r}, v{SUM+r}, 63")
    a("s_nop 1")
    inv512 = hx(f2u(1.0 / 512))
    for r in range(8):
        a(f"""
        v_mov_b32 v{8+4*r}, s{20+r}
        v_mul_f32 v{8+4*r}, {inv512}, v{8+4*r}
        """)
    for r in range(8):
        mu = 8 + 4 * r
        a(f"""
        v_pk_add_f32 v[4:5], v[{val(r,0)}:{val(r,1)}], v[{mu}:{mu+1}] op_sel_hi:[1,0] neg_lo:[0,1] neg_hi:[0,1]
        v_pk_add_f32 v[6:7], v[{val(r,2)}:{val(r,3)}], v[{mu}:{mu+1}] op_sel_hi:[1,0] neg_lo:[0,1] neg_hi:[0,1]
        v_pk_mul_f32 v[112:113], v[4:5], v[4:5]
        v_pk_mul_f32 v[114:115], v[6:7], v[6:7]
        v_pk_add_f32 v[4:5], v[{val(r,4)}:{val(r,5)}], v[{mu}:{mu+1}] op_sel_hi:[1,0] neg_lo:[0,1] neg_hi:[0,1]
        v_pk_add_f32 v[6:7], v[{val(r,6)}:{val(r,7)}], v[{mu}:{mu+1}] op_sel_hi:[1,0] neg_lo:[0,1] neg_hi:[0,1]
        v_pk_fma_f32 v[112:113], v[4:5], v[4:5], v[112:113]
        v_pk_fma_f32 v[114:115], v[6:7], v[6:7], v[114:115]
        v_pk_add_f32 v[112:113], v[112:113], v[114:115]
        v_add_f32 v{SUM+r}, v112, v113
        """)
    a("s_nop 1")
    dpp_reduce(SUM)
    a("s_nop 1")
    for r in range(8):
        a(f"v_readlane_b32 s{32+r}, v{SUM+r}, 63")
    a("s_nop 1")
    eps = hx(f2u(1e-5))
    RCP = [112, 114, 116, 118, 120, 122, 124, 6]
    for r in range(8):
        a(f"""
        v_mov_b32 v4, s{32+r}
        v_mul_f32 v4, {inv512}, v4
        v_cvt_pk_bf16_f32 v4, v4, v{8+4*r}
        v_and_b32 v{8+4*r}, 0xffff0000, v4
        v_lshlrev_b32 v4, 16, v4
        v_add_f32 v4, {eps}, v4
        v_cvt_pk_bf16_f32 v4, v4, v4
        v_lshlrev_b32 v4, 16, v4
        v_sqrt_f32 v4, v4
        s_nop 0
        v_cvt_pk_bf16_f32 v4, v4, v4
        v_lshlrev_b32 v{10+4*r}, 16, v4
        v_rcp_f32 v{RCP[r]}, v{10+4*r}
        """)
    stamp(2)
    a(f"""
    v_lshrrev_b32 v3, 1, v2
    v_lshlrev_b32 v3, 10, v3
    v_and_b32 v4, 1, v2
    v_lshl_add_u32 v3, v4, 9, v3
    s_lshr_b32 s19, s17, 5
    s_lshl_b32 s19, s19, 15
    s_and_b32 s18, s17, 31
    s_lshl_b32 s18, s18, 4
    s_add_u32 s18, s18, s19
    """)
    for r in range(8):
        mb, den, rc = 8 + 4 * r, 10 + 4 * r, RCP[r]
        o = 104 + 4 * (r % 2)
        for k in range(0, 8, 2):
            x0 = val(r, k)
            a(f"""
            v_pk_add_f32 v[4:5], v[{x0}:{x0+1}], v[{mb}:{mb+1}] op_sel_hi:[1,0] neg_lo:[0,1] neg_hi:[0,1]
            v_cvt_pk_bf16_f32 v4, v4, v5
            v_and_b32 v5, 0xffff0000, v4
            v_lshlrev_b32 v4, 16, v4
            v_pk_mul_f32 v[{x0}:{x0+1}], v[4:5], v[{rc}:{rc+1}] op_sel_hi:[1,0]
            v_pk_fma_f32 v[4:5], v[{x0}:{x0+1}], v[{den}:{den+1}], v[4:5] op_sel_hi:[1,0,1] neg_lo:[1,0,0] neg_hi:[1,0,0]
            v_pk_fma_f32 v[{x0}:{x0+1}], v[4:5], v[{rc}:{rc+1}], v[{x0}:{x0+1}] op_sel_hi:[1,0,1]
            v_cvt_pk_bf16_f32 v{o+k//2}, v{x0}, v{x0+1}
            """)
        a(f"buffer_store_dwordx4 v[{o}:{o+3}], v3, s[80:83], s18 offen offset:{16*r}")
    stamp_flush(0)
    a("s_endpgm")

    a.label("k1_shg")
    if "shg" in SKIP: a("s_endpgm")
    stamp(0)
    a(f"""
    s_load_dwordx4 s[4:7], s[0:1], 64
    s_sub_u32 s16, s2, {K1_KG + K1_LN}
    s_lshl_b32 s16, s16, 2
    s_add_u32 s16, s16, s3
    s_lshr_b32 s17, s16, 4
    s_lshr_b32 s18, s16, 3
    s_and_b32 s18, s18, 1
    s_and_b32 s19, s16, 7
    s_waitcnt lgkmcnt(0)
    """)
    ws_srd(80)
    a(f"""
    s_cmp_eq_u32 s18, 0
    s_cselect_b32 s84, s4, s6
    s_cselect_b32 s85, s5, s7
    s_and_b32 s85, s85, 0xffff
    s_mov_b32 s86, {512*1792*2}
    s_mov_b32 s87, 0x00020000
    v_lshrrev_b32 v3, 5, v2
    v_mul_u32_u24 v3, {8*3584}, v3
    v_and_b32 v4, 31, v2
    v_lshl_add_u32 v3, v4, 1, v3
    s_lshl_b32 s20, s17, 6
    v_add_u32 v3, s20, v3
    s_mul_i32 s20, s19, {64*3584}
    """)
    for fr in range(4):
        for e in range(8):
            a(f"""
            buffer_load_ushort v{10+8*fr+e}, v3, s[84:87], s20 offen
            s_add_u32 s20, s20, 3584
            """)
        a(f"s_add_u32 s20, s20, {8*3584}")
    a(f"""
    s_lshl_b32 s20, s17, 1
    s_add_u32 s20, s20, s18
    s_lshl_b32 s20, s20, 15
    s_lshl_b32 s21, s19, 12
    s_add_u32 s20, s20, s21
    s_add_u32 s20, s20, {WGF}
    v_lshlrev_b32 v4, 4, v2
    """)
    for fr in range(4):
        a(f"s_waitcnt vmcnt({24-8*fr})")
        for i in range(4):
            a(f"v_lshl_or_b32 v{50+4*fr+i}, v{10+8*fr+2*i+1}, 16, v{10+8*fr+2*i}")
        a(f"buffer_store_dwordx4 v[{50+4*fr}:{53+4*fr}], v4, s[80:83], s20 offen offset:{1024*fr}")
    stamp_flush(0)
    a("s_endpgm")

    a.label("k1_end")
    a("s_endpgm")


K2_CV = 256
K2_G1 = 224
K2_SD = 32
K2_TOTAL = K2_CV + K2_G1 + K2_SD
K2_LDS = 73728


def gen_k2():
    if os.environ.get("ORDER", "c") == "g":
        ORD = f"""s_mov_b32 s97, s2
    s_add_u32 s2, s2, {K2_CV}
    s_cmp_lt_u32 s97, {K2_G1}
    s_cbranch_scc1 k2_gemm
    s_sub_u32 s2, s97, {K2_G1}"""
    else:
        ORD = f"""s_cmp_ge_u32 s2, {K2_CV}
    s_cbranch_scc1 k2_gemm"""
    a.raw(".text")
    a.raw(".globl k2_kernel")
    a.raw(".p2align 8")
    a.raw(".type k2_kernel,@function")
    a.label("k2_kernel")
    a(f"""
    s_cmp_ge_u32 s2, {K2_TOTAL}
    s_cbranch_scc1 k2_end
    s_load_dwordx2 s[14:15], s[0:1], 104
    v_lshrrev_b32 v1, 6, v0
    v_and_b32 v2, 63, v0
    v_readfirstlane_b32 s3, v1
    v_lshlrev_b32 v3, 4, v2
    s_waitcnt lgkmcnt(0)
    """)
    ws_srd(80)
    a(f"""
    s_cmp_ge_u32 s2, {K2_CV + K2_G1}
    s_cbranch_scc1 k2_shd
    {ORD}
    """)
    if "conv" in SKIP: a("s_endpgm")
    a(f"s_setprio {PR[2]}")
    SREG[0] = 230
    stamp(0)
    RED = 2 * IMG_STRIDE
    a(f"""
    s_lshr_b32 s16, s3, 1
    s_and_b32 s17, s3, 1
    s_lshl_b32 s18, s2, 1
    s_add_u32 s18, s18, s16
    s_mul_i32 s20, s16, {IMG_STRIDE}
    """)
    a(f"""
    s_lshl_b32 s21, s18, 12
    s_lshl_b32 s22, s17, 11
    s_add_u32 s21, s21, s22
    s_add_u32 s21, s21, {KT}
    buffer_load_dwordx4 v[40:43], v3, s[80:83], s21 offen
    buffer_load_dwordx4 v[44:47], v3, s[80:83], s21 offen offset:1024
    """)
    a(f"""
    v_lshrrev_b32 v4, 5, v2
    v_lshlrev_b32 v4, 15, v4
    v_and_b32 v34, 31, v2
    v_lshl_add_u32 v4, v34, 4, v4
    s_lshr_b32 s22, s2, 2
    s_lshl_b32 s22, s22, 9
    s_and_b32 s23, s2, 3
    s_lshl_b32 s23, s23, 2
    s_add_u32 s22, s22, s23
    s_lshl_b32 s23, s3, 19
    s_add_u32 s22, s22, s23
    """)
    for i in range(8):
        a(f"buffer_load_dword v{128+i}, v4, s[80:83], s22 offen")
        if i < 7:
            a("s_add_u32 s22, s22, 65536")
    a(f"""
    v_lshrrev_b32 v24, 5, v2
    v_mul_u32_u24 v24, {96*16}, v24
    v_lshl_add_u32 v24, v34, 4, v24
    s_mul_i32 s84, s17, {4*96*16}
    s_add_u32 s84, s84, s20
    s_add_u32 s84, s84, {KF_OFF}
    v_add_u32 v24, s84, v24
    v_mov_b32 v28, 0
    v_mov_b32 v29, 0
    v_mov_b32 v30, 0
    v_mov_b32 v31, 0
    ds_write_b128 v24, v[28:31]
    ds_write_b128 v24, v[28:31] offset:{2*96*16}
    v_lshlrev_b32 v25, 1, v2
    v_add_u32 v25, {2*2048}, v25
    s_cmp_lg_u32 s3, 0
    s_cbranch_scc1 k2_cv_nozero
    v_cmp_gt_u32 vcc, 32, v2
    s_and_saveexec_b64 s[24:25], vcc
    ds_write_b16 v25, v28 offset:{UR_O}
    ds_write_b16 v25, v28 offset:{UR_O + IMG_STRIDE}
    v_cmp_gt_u32 vcc, 31, v2
    s_and_b64 exec, exec, vcc
    ds_write_b16 v25, v28 offset:2
    ds_write_b16 v25, v28 offset:{2 + IMG_STRIDE}
    s_mov_b64 exec, s[24:25]
    """)
    a.label("k2_cv_nozero")
    a(f"""
    s_lshl_b32 s84, s17, 4
    v_lshlrev_b32 v26, 5, v2
    v_add_u32 v26, s84, v26
    s_lshl_b32 s84, s16, 12
    s_add_u32 s84, s84, {RED}
    """)
    for e in range(16):
        a(f"""
        v_add_u32 v20, {e}, v26
        v_cvt_f32_u32 v20, v20
        v_cvt_pk_bf16_f32 v20, v20, v20
        v_lshlrev_b32 v20, 16, v20
        v_cvt_u32_f32 v20, v20
        v_lshrrev_b32 v21, 8, v20
        v_and_b32 v22, 7, v20
        v_lshrrev_b32 v23, 1, v20
        v_and_b32 v23, 0x7c, v23
        v_lshrrev_b32 v24, 1, v22
        v_add_u32 v24, 8, v24
        v_lshrrev_b32 v25, 2, v22
        v_lshl_add_u32 v25, v21, 1, v25
        v_add_u32 v25, 8, v25
        v_add_u32 v27, 12, v21
        v_cmp_le_u32 vcc, 1, v21
        v_add_u32 v23, s84, v23
        s_nop 0
        v_cndmask_b32 v22, v22, v24, vcc
        v_cmp_le_u32 vcc, 2, v21
        s_nop 1
        v_cndmask_b32 v22, v22, v25, vcc
        v_cmp_le_u32 vcc, 4, v21
        s_nop 1
        v_cndmask_b32 v22, v22, v27, vcc
        v_lshl_add_u32 v{136+e}, v22, 7, v23
        """)
    a(f"""
    v_lshrrev_b32 v20, 5, v2
    v_lshlrev_b32 v20, 3, v20
    v_sub_u32 v20, v20, v34
    v_lshlrev_b32 v20, 1, v20
    v_and_b32 v21, 1, v34
    v_mul_u32_u24 v21, {UR_O - 2}, v21
    v_add_u32 v20, v20, v21
    s_lshl_b32 s21, s17, 5
    s_add_u32 s21, s21, s20
    s_add_u32 s21, s21, {2*(2048 - 16*126)}
    v_add_u32 v152, s21, v20
    v_add_u32 v153, 1024, v152
    v_add_u32 v154, 2048, v152
    v_add_u32 v155, 3072, v152
    v_lshrrev_b32 v20, 5, v2
    v_mul_u32_u24 v20, {96*16}, v20
    v_lshl_add_u32 v20, v34, 4, v20
    s_mul_i32 s21, s17, {2*96*16}
    s_add_u32 s21, s21, s20
    s_add_u32 s21, s21, {KF_OFF - 31*16}
    v_add_u32 v156, s21, v20
    s_lshl_b32 s23, s3, 10
    s_sub_u32 s23, {4096 - 2*448}, s23
    v_lshlrev_b32 v157, 1, v2
    v_sub_u32 v157, s23, v157
    v_lshrrev_b32 v158, 5, v2
    v_lshlrev_b32 v158, 9, v158
    v_lshl_add_u32 v158, v34, 2, v158
    s_lshl_b32 s84, s3, 11
    s_add_u32 s84, s84, {RED}
    v_add_u32 v158, s84, v158
    s_mul_i32 s84, s17, {2*96*16}
    s_add_u32 s84, s84, s20
    s_add_u32 s84, s84, {KF_OFF + 32*16}
    v_add_u32 v159, s84, v3
    """)
    a("s_waitcnt vmcnt(8)")
    stamp(3)
    for g in range(2):
        for r in range(4):
            a(f"ds_write_b32 v158, v{40+4*g+r} offset:{1024*g+128*r}")
    for i in range(8):
        o = 128 * (7 - i)
        a(f"""
        s_waitcnt vmcnt({7-i})
        ds_write_b16 v157, v{128+i} offset:{o}
        ds_write_b16 v157, v{128+i} offset:{o + UR_O - 2}
        ds_write_b16_d16_hi v157, v{128+i} offset:{o + IMG_STRIDE}
        ds_write_b16_d16_hi v157, v{128+i} offset:{o + IMG_STRIDE + UR_O - 2}
        """)
    a(f"""
    s_waitcnt lgkmcnt(0)
    s_barrier
    """)
    stamp(4)
    for e in range(16):
        b = 40 + 2 * e
        a(f"ds_read_b32 v{b}, v{136+e}")
    for i in range(32):
        a(f"v_mov_b32 v{160+i}, 0")
    a("s_waitcnt lgkmcnt(0)")
    for uu in range(2):
        for i in range(4):
            e0 = 40 + 16 * uu + 4 * i
            e1 = e0 + 2
            a(f"""
            v_cvt_pk_bf16_f32 v{20+8*uu+i}, v{e0}, v{e1}
            v_lshlrev_b32 v12, 16, v{20+8*uu+i}
            v_and_b32 v13, 0xffff0000, v{20+8*uu+i}
            v_sub_f32 v12, v{e0}, v12
            v_sub_f32 v13, v{e1}, v13
            v_cvt_pk_bf16_f32 v{24+8*uu+i}, v12, v13
            """)
        a(f"""
        ds_write_b128 v159, v[{20+8*uu}:{23+8*uu}] offset:{96*16*uu}
        ds_write_b128 v159, v[{24+8*uu}:{27+8*uu}] offset:{96*16*uu + 4*96*16}
        """)
    a(f"""
    s_waitcnt lgkmcnt(0)
    s_barrier
    """)
    a(f"s_setprio {PR[3]}")
    stamp(1)
    NSET = 3
    SETB = 64
    CACC = 160

    def cv_reads(dl):
        st = SETB + 20 * (dl % NSET)
        off = 64 * (63 - dl)
        base = 152 + off // 1024
        o = (off % 1024) // 4
        a(f"ds_read2_b32 v[{st}:{st+1}], v{base} offset0:{o} offset1:{o+1}")
        a(f"ds_read2_b32 v[{st+2}:{st+3}], v{base} offset0:{o+2} offset1:{o+3}")
        n = 2
        for c in ((1, 0) if dl < 32 else (1,)):
            for hl in range(2):
                r = st + 4 + 8 * c + 4 * hl
                a(f"ds_read_b128 v[{r}:{r+3}], v156 offset:{16*(63-dl) + 512*c + 6144*hl}")
                n += 1
        return n

    cnt = {}
    cnt[0] = cv_reads(0)
    cnt[1] = cv_reads(1)
    for dl in range(64):
        if dl + 2 < 64:
            cnt[dl + 2] = cv_reads(dl + 2)
        pend = sum(cnt[x] for x in (dl + 1, dl + 2) if x < 64)
        a(f"s_waitcnt lgkmcnt({pend})")
        st = SETB + 20 * (dl % NSET)
        for c in ((1, 0) if dl < 32 else (1,)):
            for hl in range(2):
                r = st + 4 + 8 * c + 4 * hl
                acc = CACC + 16 * c
                a(f"v_mfma_f32_32x32x16_bf16 v[{acc}:{acc+15}], v[{st}:{st+3}], v[{r}:{r+3}], v[{acc}:{acc+15}]")
    stamp(2)
    a("""
    s_nop 7
    s_nop 3
    v_and_b32 v4, 31, v2
    """)
    for i in range(32):
        a(f"v_mov_b32 v{64+i}, v{CACC+i}")
    a(f"""
    s_lshl_b32 s21, s3, 12
    s_add_u32 s21, s21, {RED}
    v_add_u32 v5, s21, v3
    s_xor_b32 s21, s3, 1
    s_lshl_b32 s21, s21, 12
    s_add_u32 s21, s21, {RED}
    v_add_u32 v6, s21, v3
    s_nop 7
    s_cmp_eq_u32 s17, 0
    s_cbranch_scc1 k2_cv_sp0
    """)
    for g in range(4):
        a(f"ds_write_b128 v5, v[{64+4*g}:{67+4*g}] offset:{1024*g}")
    a("s_nop 1")
    for i in range(16):
        a(f"v_mov_b32 v{64+i}, v{80+i}")
    a("s_branch k2_cv_join")
    a.label("k2_cv_sp0")
    for g in range(4):
        a(f"ds_write_b128 v5, v[{80+4*g}:{83+4*g}] offset:{1024*g}")
    a.label("k2_cv_join")
    a(f"""
    s_waitcnt lgkmcnt(0)
    s_barrier
    """)
    for g in range(4):
        a(f"ds_read_b128 v[{100+4*g}:{103+4*g}], v6 offset:{1024*g}")
    a(f"""
    v_lshlrev_b32 v5, 6, v4
    v_lshrrev_b32 v7, 5, v2
    v_lshl_add_u32 v5, v7, 3, v5
    s_lshl_b32 s21, s18, 12
    s_lshl_b32 s22, s17, 11
    s_add_u32 s21, s21, s22
    s_add_u32 s21, s21, {YT}
    s_waitcnt lgkmcnt(0)
    """)
    for g in range(4):
        for r in range(4):
            a(f"v_add_f32 v{64+4*g+r}, v{64+4*g+r}, v{100+4*g+r}")
        a(f"""
        v_cvt_pk_bf16_f32 v{120+2*g}, v{64+4*g}, v{65+4*g}
        v_cvt_pk_bf16_f32 v{121+2*g}, v{66+4*g}, v{67+4*g}
        buffer_store_dwordx2 v[{120+2*g}:{121+2*g}], v5, s[80:83], s21 offen offset:{16*g}
        """)
    stamp_flush(1)
    a("s_endpgm")

    a.label("k2_gemm")
    if "gemm1" in SKIP: a("s_endpgm")
    a(f"s_setprio {PR[0]}")
    SREG[0] = 100
    stamp(0)
    a(f"""
    s_sub_u32 s16, s2, {K2_CV}
    s_and_b32 s17, s16, 15
    s_lshr_b32 s18, s16, 4
    s_lshl_b32 s19, s18, 2
    s_add_u32 s19, s19, s3
    s_lshl_b32 s20, s17, 2
    s_add_u32 s21, s20, s3
    s_lshl_b32 s22, s19, 16
    s_add_u32 s22, s22, {WGF}
    s_add_u32 s23, s22, 32768
    s_lshl_b32 s24, s21, 15
    s_add_u32 s24, s24, {XNF}
    s_mul_i32 s25, s3, 3072
    v_add_u32 v4, s25, v3
    v_add_u32 v5, {3*12288}, v4
    v_add_u32 v6, {3*12288}, v3
    """)
    NB = 6

    def dma_parts(k):
        b = k % NB
        return [
            f"""s_add_u32 s26, s25, {b*12288}
            s_mov_b32 m0, s26
            s_add_u32 s26, s26, 1024
            buffer_load_dwordx4 v3, s[80:83], s22 offen lds
            s_add_u32 s22, s22, 1024""",
            f"""s_mov_b32 m0, s26
            s_add_u32 s26, s26, 1024
            buffer_load_dwordx4 v3, s[80:83], s23 offen lds
            s_add_u32 s23, s23, 1024""",
            f"""s_mov_b32 m0, s26
            s_nop 0
            buffer_load_dwordx4 v3, s[80:83], s24 offen lds
            s_add_u32 s24, s24, 1024""",
        ]

    def read_parts(k):
        b = k % NB
        f = 16 + 24 * (k % 2)
        va = 4 if b < 3 else 5
        vb = 3 if b < 3 else 6
        bo = (b % 3) * 12288
        out = [f"ds_read_b128 v[{f}:{f+3}], v{va} offset:{bo}",
               f"ds_read_b128 v[{f+8}:{f+11}], v{vb} offset:{bo + 2048}",
               f"ds_read_b128 v[{f+4}:{f+7}], v{va} offset:{bo + 1024}"]
        for t in range(1, 4):
            out.append(f"ds_read_b128 v[{f+8+4*t}:{f+11+4*t}], v{vb} offset:{bo + 3072*t + 2048}")
        return out

    for k in range(5):
        for p in dma_parts(k):
            a(p)
    ACC = 128
    for i in range(128):
        a(f"v_mov_b32 v{ACC+i}, 0")
    a("""
    s_waitcnt vmcnt(12)
    s_barrier
    """)
    stamp(1)
    for p in read_parts(0):
        a(p)
    for k in range(32):
        n = 3 * max(0, min(k + 4, 31) - (k + 1))
        if k + 1 < 32:
            a(f"s_waitcnt vmcnt({n}) lgkmcnt(0)")
            a("s_barrier")
        else:
            a("s_waitcnt lgkmcnt(0)")
        if k == 16: stamp(2)
        rp = read_parts(k + 1) if k + 1 < 32 else []
        dp = dma_parts(k + 5) if k + 5 < 32 else []
        f = 16 + 24 * (k % 2)
        mf = []
        for t in range(4):
            for gu in range(2):
                acc = ACC + 64 * gu + 16 * t
                mf.append(f"v_mfma_f32_32x32x16_bf16 v[{acc}:{acc+15}], v[{f+4*gu}:{f+4*gu+3}], v[{f+8+4*t}:{f+11+4*t}], v[{acc}:{acc+15}]")
        fill = [rp[0:2], rp[2:4], rp[4:6], dp[0:1], dp[1:2], dp[2:3], [], []]
        for m, fl in zip(mf, fill):
            a(m)
            for x in fl:
                a(x)
    stamp(3)
    a(f"s_setprio {PR[1]}")
    K0 = hx(f2u(-2.0 * 0.7978845608028654 * L2E))
    K1c = hx(f2u(-2.0 * 0.7978845608028654 * 0.044715 * L2E))
    a(f"""
    v_mov_b32 v60, {K0}
    v_mov_b32 v62, {K1c}
    v_mov_b32 v64, 1.0
    s_mul_i32 s28, s20, {112*1024}
    s_lshl_b32 s29, s19, 11
    s_add_u32 s28, s28, s29
    s_add_u32 s28, s28, {HF}
    s_nop 7
    """)
    for t in range(4):
        for half in range(2):
            o = 16 + 4 * ((2 * t + half) % 4)
            blocks = []
            for i in range(4):
                g0 = ACC + 16 * t + 8 * half + 2 * i
                u0 = g0 + 64
                tb = 66 + 8 * i
                A, B, C, D = tb, tb + 2, tb + 4, tb + 6
                blocks.append([
                    f"v_cvt_pk_bf16_f32 v{C}, v{g0}, v{g0+1}",
                    f"v_cvt_pk_bf16_f32 v{D}, v{u0}, v{u0+1}",
                    f"v_lshlrev_b32 v{A}, 16, v{C}",
                    f"v_and_b32 v{A+1}, 0xffff0000, v{C}",
                    f"v_mul_f32 v{B}, v{A}, v{A}",
                    f"v_mul_f32 v{B+1}, v{A+1}, v{A+1}",
                    f"v_fma_f32 v{B}, v{B}, v62, v60",
                    f"v_fma_f32 v{B+1}, v{B+1}, v62, v60",
                    f"v_mul_f32 v{B}, v{B}, v{A}",
                    f"v_mul_f32 v{B+1}, v{B+1}, v{A+1}",
                    f"v_exp_f32 v{B}, v{B}",
                    f"v_exp_f32 v{B+1}, v{B+1}",
                    f"v_lshlrev_b32 v{C}, 16, v{D}",
                    f"v_and_b32 v{C+1}, 0xffff0000, v{D}",
                    f"v_add_f32 v{B}, 1.0, v{B}",
                    f"v_add_f32 v{B+1}, 1.0, v{B+1}",
                    f"v_rcp_f32 v{B}, v{B}",
                    f"v_rcp_f32 v{B+1}, v{B+1}",
                    f"v_mul_f32 v{B}, v{B}, v{A}",
                    f"v_mul_f32 v{B+1}, v{B+1}, v{A+1}",
                    f"v_cvt_pk_bf16_f32 v{B}, v{B}, v{B+1}",
                    f"v_lshlrev_b32 v{A}, 16, v{B}",
                    f"v_and_b32 v{A+1}, 0xffff0000, v{B}",
                    f"v_mul_f32 v{A}, v{A}, v{C}",
                    f"v_mul_f32 v{A+1}, v{A+1}, v{C+1}",
                    f"v_cvt_pk_bf16_f32 v{o+i}, v{A}, v{A+1}",
                ])
            for j in range(len(blocks[0])):
                for bl in blocks:
                    a(bl[j])
            a(f"buffer_store_dwordx4 v[{o}:{o+3}], v3, s[80:83], s28 offen offset:{1024*half}")
        a(f"s_add_u32 s28, s28, {112*1024}")
    stamp_flush(1)
    a("s_endpgm")
    a.label("k2_shd")
    a(f"""
    s_load_dwordx2 s[4:5], s[0:1], 80
    s_sub_u32 s16, s2, {K2_CV + K2_G1}
    s_lshl_b32 s16, s16, 2
    s_add_u32 s16, s16, s3
    s_lshr_b32 s17, s16, 4
    s_and_b32 s18, s16, 15
    v_lshrrev_b32 v5, 5, v2
    v_lshlrev_b32 v5, 12, v5
    v_and_b32 v4, 31, v2
    v_lshl_add_u32 v5, v4, 1, v5
    s_lshl_b32 s20, s18, 6
    v_add_u32 v5, s20, v5
    s_mul_i32 s20, s17, {14*16*1024}
    s_mul_i32 s22, s18, {112*1024}
    s_mul_i32 s21, s17, {14*1024}
    s_add_u32 s22, s22, s21
    s_add_u32 s22, s22, {WDF}
    s_waitcnt lgkmcnt(0)
    s_mov_b32 s84, s4
    s_and_b32 s85, s5, 0xffff
    s_mov_b32 s86, {512*1792*2}
    s_mov_b32 s87, 0x00020000
    """)
    for half in range(2):
        for fr in range(7):
            for e in range(8):
                f = 16 * (7 * half + fr) + 8 * (e >> 2) + (e & 3)
                a(f"""
                s_add_u32 s21, s20, {f*1024}
                buffer_load_ushort v{10+8*fr+e}, v5, s[84:87], s21 offen
                """)
        for fr in range(7):
            a(f"s_waitcnt vmcnt({48-8*fr + fr})")
            for i in range(4):
                a(f"v_lshl_or_b32 v{70+4*fr+i}, v{10+8*fr+2*i+1}, 16, v{10+8*fr+2*i}")
            a(f"""
            s_add_u32 s21, s22, {(7*half+fr)*1024}
            buffer_store_dwordx4 v[{70+4*fr}:{73+4*fr}], v3, s[80:83], s21 offen
            """)
        if half == 0:
            a("s_waitcnt vmcnt(0)")
    a.label("k2_end")
    a("s_endpgm")


K3_TOTAL = 256
K3_LDS = 131072


def gen_k3():
    a.raw(".text")
    a.raw(".globl k3_kernel")
    a.raw(".p2align 8")
    a.raw(".type k3_kernel,@function")
    a.label("k3_kernel")
    a(f"""
    s_cmp_ge_u32 s2, {K3_TOTAL}
    s_cbranch_scc1 k3_end
    s_load_dwordx2 s[14:15], s[0:1], 104
    s_load_dwordx2 s[4:5], s[0:1], 0
    s_load_dwordx2 s[6:7], s[0:1], 48
    s_load_dwordx2 s[8:9], s[0:1], 88
    v_lshrrev_b32 v1, 6, v0
    v_and_b32 v2, 63, v0
    v_readfirstlane_b32 s3, v1
    v_lshlrev_b32 v3, 4, v2
    s_lshr_b32 s18, s2, 3
    s_and_b32 s16, s18, 7
    s_lshr_b32 s18, s18, 3
    s_and_b32 s17, s2, 7
    s_lshl_b32 s17, s17, 2
    s_add_u32 s17, s17, s18
    s_waitcnt lgkmcnt(0)
    """)
    ws_srd(80)
    a(f"""
    s_and_b32 s19, s3, 1
    s_lshl_b32 s20, s16, 1
    s_add_u32 s20, s20, s19
    s_mul_i32 s20, s20, {112*1024}
    s_add_u32 s20, s20, {WDF}
    s_lshl_b32 s21, s17, 1
    s_add_u32 s21, s21, s19
    s_mul_i32 s21, s21, {112*1024}
    s_add_u32 s21, s21, {HF}
    s_cmp_lt_u32 s3, 2
    s_cselect_b32 s20, s20, s21
    s_lshl_b32 s25, s3, 12
    """)
    SREG[0] = 90
    stamp(0)
    NBUF = 8
    NST = 28

    def dma(st):
        b = st % NBUF
        return [f"""
        s_add_u32 s26, s25, {b*16384}
        s_mov_b32 m0, s26
        s_nop 0
        buffer_load_dwordx4 v3, s[80:83], s20 offen lds
        buffer_load_dwordx4 v3, s[80:83], s20 offen offset:1024 lds
        """, f"""
        buffer_load_dwordx4 v3, s[80:83], s20 offen offset:2048 lds
        buffer_load_dwordx4 v3, s[80:83], s20 offen offset:3072 lds
        s_add_u32 s20, s20, 4096
        """]

    for st in range(NBUF - 1):
        for p in dma(st):
            a(p)
    a(f"""
    s_mov_b32 s84, s4
    s_and_b32 s85, s5, 0xffff
    s_mov_b32 s86, 0x200000
    s_mov_b32 s87, 0x00020000
    s_mov_b32 s88, s6
    s_and_b32 s89, s7, 0xffff
    s_mov_b32 s90, 1024
    s_mov_b32 s91, 0x00020000
    s_mov_b32 s92, s8
    s_and_b32 s93, s9, 0xffff
    s_mov_b32 s94, 0x200000
    s_mov_b32 s95, 0x00020000
    """)
    a(f"""
    s_lshr_b32 s24, s3, 1
    s_and_b32 s22, s3, 1
    s_lshl_b32 s26, s16, 1
    s_add_u32 s26, s26, s24
    s_lshl_b32 s27, s17, 1
    s_add_u32 s27, s27, s22
    v_and_b32 v4, 31, v2
    v_lshrrev_b32 v5, 5, v2
    v_lshlrev_b32 v6, 10, v4
    v_lshl_add_u32 v6, v5, 3, v6
    s_lshl_b32 s28, s27, 15
    s_lshl_b32 s29, s26, 6
    s_add_u32 s28, s28, s29
    v_lshlrev_b32 v7, 4, v4
    v_lshl_add_u32 v7, v5, 3, v7
    s_lshl_b32 s30, s27, 15
    s_lshl_b32 s31, s26, 11
    s_add_u32 s30, s30, s31
    s_add_u32 s30, s30, {XNF}
    v_lshlrev_b32 v8, 3, v5
    v_lshlrev_b32 v9, 14, v5
    v_lshl_add_u32 v9, v4, 1, v9
    s_lshl_b32 s32, s26, 17
    s_lshl_b32 s33, s27, 6
    s_add_u32 s32, s32, s33
    s_add_u32 s32, s32, {YT}
    s_lshl_b32 s24, s24, 12
    s_lshl_b32 s22, s22, 12
    s_add_u32 s22, s22, 8192
    v_add_u32 v50, s24, v3
    v_add_u32 v51, s22, v3
    v_add_u32 v52, 65536, v50
    v_add_u32 v53, 65536, v51
    """)
    ACC = 96
    for i in range(16):
        a(f"v_mov_b32 v{ACC+i}, 0")

    def reads(st):
        b = st % NBUF
        f = 112 + 32 * (st % 2)
        va, vb = (50, 51) if b < 4 else (52, 53)
        bo = (b % 4) * 16384
        out = []
        for k in range(4):
            out.append(f"ds_read_b128 v[{f+8*k}:{f+8*k+3}], v{va} offset:{bo + 1024*k}")
            out.append(f"ds_read_b128 v[{f+8*k+4}:{f+8*k+7}], v{vb} offset:{bo + 1024*k}")
        return out

    a(f"""
    s_waitcnt vmcnt({4*(NBUF-2)})
    s_barrier
    """)
    stamp(1)
    for r in reads(0):
        a(r)
    EPI_AT = 20
    for st in range(NST):
        issued = min(st + NBUF - 2, NST - 1)
        n = 4 * max(0, issued - (st + 1))
        if st > EPI_AT:
            n += 28 if issued <= EPI_AT + NBUF - 1 else 0
        if st + 1 < NST:
            a(f"s_waitcnt vmcnt({min(n,63)}) lgkmcnt(0)")
            a("s_barrier")
        else:
            a("s_waitcnt lgkmcnt(0)")
        if st == 14: stamp(2)
        rp = reads(st + 1) if st + 1 < NST else []
        dp = dma(st + NBUF - 1) if st + NBUF - 1 < NST else []
        f = 112 + 32 * (st % 2)
        fill = [rp[0:4], rp[4:8], dp[0:1], dp[1:2]]
        for k in range(4):
            a(f"v_mfma_f32_32x32x16_bf16 v[{ACC}:{ACC+15}], v[{f+8*k}:{f+8*k+3}], v[{f+8*k+4}:{f+8*k+7}], v[{ACC}:{ACC+15}]")
            for x in fill[k]:
                a(x)
        if st == EPI_AT:
            for g in range(4):
                a(f"buffer_load_dwordx2 v[{10+2*g}:{11+2*g}], v6, s[84:87], s28 offen offset:{16*g}")
                a(f"buffer_load_dwordx2 v[{18+2*g}:{19+2*g}], v7, s[80:83], s30 offen offset:{(g>>1)*1024 + (g&1)*512}")
                a(f"buffer_load_dwordx2 v[{26+2*g}:{27+2*g}], v8, s[88:91], s29 offen offset:{16*g}")
            for g in range(4):
                for r in range(4):
                    if r == 0:
                        a(f"s_add_u32 s33, s32, {8*g*4096}")
                    else:
                        a(f"s_add_u32 s33, s33, 4096")
                    a(f"buffer_load_ushort v{34+4*g+r}, v9, s[80:83], s33 offen")
    stamp(3)
    a(f"""
    s_mov_b32 s34, {hx(L2E_HI | 0x80000000)}
    s_waitcnt vmcnt(0)
    s_nop 11
    """)
    stamp(4)
    for g in range(4):
        for p in range(2):
            c0 = ACC + 4 * g + 2 * p
            xr = 10 + 2 * g + p
            nr = 18 + 2 * g + p
            dr = 26 + 2 * g + p
            y0 = 34 + 4 * g + 2 * p
            a(f"""
            v_cvt_pk_bf16_f32 v52, v{c0}, v{c0+1}
            v_lshlrev_b32 v53, 16, v52
            v_and_b32 v54, 0xffff0000, v52
            v_mul_f32 v55, s34, v53
            v_mul_f32 v56, s34, v54
            v_exp_f32 v55, v55
            v_exp_f32 v56, v56
            v_lshlrev_b32 v57, 16, v{nr}
            v_and_b32 v58, 0xffff0000, v{nr}
            v_lshlrev_b32 v59, 16, v{dr}
            v_and_b32 v60, 0xffff0000, v{dr}
            v_add_f32 v55, 1.0, v55
            v_add_f32 v56, 1.0, v56
            v_rcp_f32 v55, v55
            v_rcp_f32 v56, v56
            v_mul_f32 v57, v57, v59
            v_mul_f32 v58, v58, v60
            v_mul_f32 v55, v55, v53
            v_mul_f32 v56, v56, v54
            v_cvt_pk_bf16_f32 v57, v57, v58
            v_cvt_pk_bf16_f32 v55, v55, v56
            v_lshlrev_b32 v59, 16, v{y0}
            v_lshlrev_b32 v60, 16, v{y0+1}
            v_and_b32 v58, 0xffff0000, v57
            v_lshlrev_b32 v57, 16, v57
            v_add_f32 v57, v57, v59
            v_add_f32 v58, v58, v60
            v_cvt_pk_bf16_f32 v57, v57, v58
            v_and_b32 v56, 0xffff0000, v55
            v_lshlrev_b32 v55, 16, v55
            v_and_b32 v58, 0xffff0000, v57
            v_lshlrev_b32 v57, 16, v57
            v_mul_f32 v57, v57, v55
            v_mul_f32 v58, v58, v56
            v_cvt_pk_bf16_f32 v57, v57, v58
            v_lshlrev_b32 v59, 16, v{xr}
            v_and_b32 v60, 0xffff0000, v{xr}
            v_and_b32 v58, 0xffff0000, v57
            v_lshlrev_b32 v57, 16, v57
            v_add_f32 v57, v57, v59
            v_add_f32 v58, v58, v60
            v_cvt_pk_bf16_f32 v{64+2*g+p}, v57, v58
            """)
        a(f"buffer_store_dwordx2 v[{64+2*g}:{65+2*g}], v6, s[92:95], s28 offen offset:{16*g}")
    stamp_flush(2)
    a.label("k3_end")
    a("s_endpgm")


def descriptor(name, vgpr):
    a.raw(f""".amdhsa_kernel {name}
  .amdhsa_next_free_vgpr {vgpr}
  .amdhsa_next_free_sgpr 102
  .amdhsa_accum_offset {((vgpr+3)//4)*4}
  .amdhsa_group_segment_fixed_size 0
  .amdhsa_kernarg_size 112
  .amdhsa_user_sgpr_count 2
  .amdhsa_user_sgpr_kernarg_segment_ptr 1
  .amdhsa_system_sgpr_workgroup_id_x 1
.end_amdhsa_kernel""")


def main():
    hdr = open(f"cdna_kernels/{NAME}.s.ref").read().split("\n")
    keep = []
    for ln in hdr:
        if not ln.startswith(";"):
            break
        if "@launch" in ln or "Override launch" in ln or "grid=ceil" in ln:
            continue
        keep.append(ln)
    out = "\n".join(keep) + "\n"
    out += f"; @launch kernel=k1_kernel grid=({K1_TOTAL},1,1) block=(256,1,1) lds=20480\n"
    out += f"; @launch kernel=k2_kernel grid=({K2_TOTAL},1,1) block=(256,1,1) lds={K2_LDS}\n"
    out += f"; @launch kernel=k3_kernel grid=({K3_TOTAL},1,1) block=(256,1,1) lds={K3_LDS}\n"
    out += '.amdgcn_target "amdgcn-amd-amdhsa--gfx950"\n'
    gen_k1()
    gen_k2()
    gen_k3()
    a.raw('.section .rodata,"a"')
    a.raw(".p2align 6")
    descriptor("k1_kernel", 128)
    a.raw(".p2align 6")
    descriptor("k2_kernel", 256)
    a.raw(".p2align 6")
    descriptor("k3_kernel", 176)
    out += a.text()
    path = sys.argv[1] if len(sys.argv) > 1 else f"cdna_kernels/{NAME}.s"
    open(path, "w").write(out)
    print("wrote", path, len(out), "bytes")


main()
```
